```python
import torch

def _softmax(x, axis=-1):
    return torch.softmax(x, dim=axis)
def _gelu(x):
    return torch.nn.functional.gelu(x, approximate="tanh")
def _silu(x):
    return torch.nn.functional.silu(x)
def _sigmoid(x):
    return torch.sigmoid(x)
def _layernorm(x, axis=-1, eps=1e-5):
    m = x.mean(dim=axis, keepdim=True)
    v = x.var(dim=axis, keepdim=True, unbiased=False)
    return (x - m) / torch.sqrt(v + eps)
def _scatter_add(tgt, idx, src, axis=0):
    return tgt.clone().index_add_(axis, idx, src)
def _segment_sum(src, seg, n):
    out = torch.zeros((n,) + src.shape[1:], dtype=src.dtype)
    return out.index_add_(0, seg, src)
def _pad(x, pw):
    flat = tuple(v for pair in reversed(pw) for v in pair)
    return torch.nn.functional.pad(x, flat)

kernel_name = 'gated_mix__linear_attn_block__glu_gated_bilinear__prompt'

def setup_inputs():

    _w = (lambda a: (lambda t: t.to(torch.bfloat16) if t.is_floating_point() else t)(torch.as_tensor(a)))
    def _A_setup():
        B, S, D = 1, 2048, 576
        return {
            "x": _w((lambda *s: torch.randn(*s, dtype=torch.bfloat16) * 0.05)(B, S, D)),
            "wqkv": _w((lambda *s: torch.randn(*s, dtype=torch.bfloat16) * 0.8)(D, 3 * D)),
            "wo": _w((lambda *s: torch.randn(*s, dtype=torch.bfloat16) * 0.05)(D, D)),
        }
    _A_in = _A_setup()

    def _B_setup():
        B, S, D, F = 1, 2048, 576, 4608
        return {
            "x": _w((lambda *s: torch.randn(*s, dtype=torch.bfloat16) * 0.05)(B, S, D)),
            "w_gate": _w((lambda *s: torch.randn(*s, dtype=torch.bfloat16) * 1.6)(D, F) * (D ** -0.5)),
            "w_up": _w((lambda *s: torch.randn(*s, dtype=torch.bfloat16) * 1.6)(D, F) * (D ** -0.5)),
            "w_down": _w((lambda *s: torch.randn(*s, dtype=torch.bfloat16) * 1.6)(F, D) * (F ** -0.5)),
        }
    _B_in = _B_setup()

    return {
        "A_x": _A_in["x"],
        "A_wqkv": _A_in["wqkv"],
        "A_wo": _A_in["wo"],
        "B_x": _B_in["x"],
        "B_w_gate": _B_in["w_gate"],
        "B_w_up": _B_in["w_up"],
        "B_w_down": _B_in["w_down"],
        "gate_w": _w((lambda *s: torch.randn(*s, dtype=torch.bfloat16) * 0.05)(576) * 16.0),
    }

def reference(A_x, A_wqkv, A_wo, B_x, B_w_gate, B_w_up, B_w_down, gate_w):
    def _A_ref(x, wqkv, wo):
        B, S, D = x.shape
        H = 32; Dh = D // H
        qkv = (lambda x, *d: x.permute(*d))((x @ wqkv).reshape(B, S, 3, H, Dh), 2, 0, 3, 1, 4)
        q, k, v = qkv[0], qkv[1], qkv[2]
        phi = lambda t: torch.where(t > 0, t + 1, torch.exp(t)) + 1e-6
        pq, pk = phi(q), phi(k)
        kv = torch.einsum("bhsd,bhse->bhde", pk, v)
        z = torch.einsum("bhsd->bhd", pk)
        num = torch.einsum("bhqd,bhde->bhqe", pq, kv)
        den = torch.einsum("bhqd,bhd->bhq", pq, z)[..., None] + 1e-6
        o = num / den
        return (lambda x, *d: x.permute(*d))(o, 0, 2, 1, 3).reshape(B, S, D) @ wo

    def _B_ref(x, w_gate, w_up, w_down):
        g = torch.einsum("bsd,df->bsf", x, w_gate)
        u = torch.einsum("bsd,df->bsf", x, w_up)
        h = g * u
        return torch.einsum("bsf,fd->bsd", h, w_down)

    x = A_x
    g = _sigmoid((x * gate_w).sum(-1, keepdims=True))
    a = _A_ref(x, A_wqkv, A_wo)
    b = _B_ref(x, B_w_gate, B_w_up, B_w_down)
    return g * a + (1 - g) * b
```

```python
import re

REG_RE = re.compile(r"\b([vas])\[(\d+):(\d+)\]|\b([vas])(\d+)\b|\b(vcc|exec|exec_lo|exec_hi|m0|scc)\b")

def regs_of(tok):
    out = []
    for m in REG_RE.finditer(tok):
        if m.group(1):
            out += [(m.group(1), i) for i in range(int(m.group(2)), int(m.group(3)) + 1)]
        elif m.group(4):
            out.append((m.group(4), int(m.group(5))))
        else:
            n = m.group(6)
            if n.startswith("exec"): n = "exec"
            out.append((n, 0))
    return out

TRANS = ("v_exp_f32", "v_rcp_f32", "v_log_f32", "v_rsq_f32", "v_sqrt_f32")

class I:
    def __init__(self, text, tag=None, kind=None, nocount=False):
        self.text = text.strip(); self.tag = tag; self.nocount = nocount
        self.op = self.text.split()[0] if self.text else ""
        self.kind = kind or self._kind()
        self.reads, self.writes = self._rw()
    def _kind(self):
        op = self.op
        if op.endswith(":"): return "label"
        if op.startswith("v_mfma"): return "mfma"
        if op.startswith("buffer_") or op.startswith("global_"): return "vmem"
        if op.startswith("ds_"): return "ds"
        if op.startswith("v_"): return "valu"
        if op.startswith("s_load") or op.startswith("s_mem"): return "smem"
        if op.startswith("s_"): return "salu"
        return "other"
    def _rw(self):
        k = self.kind
        if k in ("label", "other", "waitvm", "waitlgkm"): return set(), set()
        body = self.text[len(self.op):]
        ops = [t.strip() for t in body.split(",")]
        R = lambda t: set(regs_of(t))
        if k == "mfma":
            return R(ops[1]) | R(ops[2]) | R(ops[3]), R(ops[0])
        if k == "vmem":
            allr = set(regs_of(body))
            if "load" in self.op and " lds" not in self.text:
                w = R(ops[0]); r = set()
                for t in ops[1:]: r |= R(t)
                return r | {("exec", 0)}, w
            if " lds" in self.text: allr.add(("m0", 0))
            return allr | {("exec", 0)}, set()
        if k == "ds":
            if "read" in self.op or "permute" in self.op:
                r = set()
                for t in ops[1:]: r |= R(t)
                return r, R(ops[0])
            return set(regs_of(body)), set()
        if k == "valu":
            w = R(ops[0]); r = set()
            rest = ops[1:]
            if self.op.startswith(("v_add_co", "v_addc_co", "v_sub_co")):
                w |= R(ops[1]); rest = ops[2:]
            for t in rest: r |= R(t)
            if self.op.startswith("v_fmac"): r |= w
            if self.op.startswith("v_cndmask") and len(ops) == 3: r.add(("vcc", 0))
            return r, w
        if k in ("salu", "smem"):
            if self.op.startswith(("s_cmp", "s_cbranch", "s_branch", "s_waitcnt", "s_barrier", "s_nop", "s_sleep", "s_endpgm", "s_setprio")):
                return set(regs_of(body)), set()
            w = R(ops[0]); r = set()
            for t in ops[1:]: r |= R(t)
            return r, w
        return set(), set()
    def states(self):
        if self.kind in ("label", "other") or getattr(self, "skip", False): return 0
        if self.op == "s_nop": return int(self.text.split()[1]) + 1
        return 1

def waitvm(*tags):
    i = I("s_waitcnt", kind="waitvm"); i.tags = tags; return i
def waitlgkm(*tags):
    i = I("s_waitcnt", kind="waitlgkm"); i.tags = tags; return i

class Timeline:
    def __init__(self):
        self.mf = []; self.items = []; self.seq = 0
    def n(self): return len(self.mf)
    def mfma(self, ins): self.mf.append(ins); return len(self.mf) - 1
    def at(self, pos, instrs):
        if not isinstance(instrs, (list, tuple)): instrs = [instrs]
        instrs = [I(x) if isinstance(x, str) else x for x in instrs]
        self.items.append((pos, self.seq, instrs)); self.seq += 1
    def spread(self, p0, p1, bundles):
        n = len(bundles)
        for k, b in enumerate(bundles):
            self.at(p0 + (p1 - p0) * (k + 0.5) / n, b)
    def linear(self):
        items = sorted(self.items, key=lambda t: (t[0], t[1]))
        out = []; j = 0
        for k in range(len(self.mf) + 1):
            while j < len(items) and items[j][0] < k:
                out += items[j][2]; j += 1
            if k < len(self.mf): out.append(self.mf[k])
        while j < len(items):
            out += items[j][2]; j += 1
        return out

def fix_hazards(ins, verbose=False):
    out = []
    lastw = {}
    lastc = {}
    laststore = {}
    t = 0; added = 0
    for x in ins:
        need = 0
        def req(p, d):
            nonlocal need
            need = max(need, d - (t - p - 1))
        if x.kind not in ("label", "other", "waitvm", "waitlgkm"):
            if x.kind == "mfma":
                ops = [s.strip() for s in x.text[len(x.op):].split(",")]
                D = set(regs_of(ops[0])); AB = set(regs_of(ops[1])) | set(regs_of(ops[2])); C = set(regs_of(ops[3]))
                for r in AB | C:
                    if r in lastw:
                        p, k, y = lastw[r]
                        if k == "valu": req(p, 2)
                        if k == "mfma":
                            if r in AB: req(p, 8)
                            elif y.writes != C: req(p, 6)
                            elif y.op != x.op: req(p, 6)
                for r in D:
                    if r in lastw and lastw[r][1] == "mfma" and r not in C: req(lastw[r][0], 6)
            else:
                for r in x.reads:
                    if r in lastw:
                        p, k, y = lastw[r]
                        if k == "mfma" and x.kind in ("valu", "vmem", "ds"): req(p, 8)
                        if k == "valu":
                            if y.op.startswith(TRANS) and x.kind == "valu": req(p, 1)
                            if y.op.startswith(TRANS) and x.kind in ("vmem", "ds"): req(p, 1)
                            if r[0] in ("s", "vcc"):
                                if x.kind == "valu": req(p, 2)
                                if x.kind == "vmem": req(p, 5)
                                if x.kind in ("salu", "smem"): req(p, 1)
                            if r[0] == "v" and x.op.startswith(("v_readfirstlane", "v_readlane")): req(p, 1)
                            if r[0] == "v" and ("dpp" in x.text or x.op.startswith("v_permlane")): req(p, 2)
                        if k == "salu" and r[0] == "m0" and x.kind == "vmem": req(p, 1)
                for r in x.writes:
                    if r in lastw and lastw[r][1] == "mfma" and x.kind in ("valu", "vmem", "ds"): req(lastw[r][0], 8)
                    if r in lastc and x.kind == "valu": req(lastc[r], 3)
                    if r in laststore: req(laststore[r], 2)
        if need > 0:
            added += need
            if verbose: print(f"  nop {need} before: {x.text}")
            while need > 0:
                k = min(need, 16); out.append(I(f"s_nop {k-1}")); t += k; need -= k
        out.append(x)
        if x.kind not in ("label", "other"):
            if x.kind == "mfma":
                ops = [s.strip() for s in x.text[len(x.op):].split(",")]
                for r in regs_of(ops[3]): lastc[r] = t
            if x.kind == "vmem" and "store" in x.op and ("x4" in x.op or "x3" in x.op):
                ops = [s.strip() for s in x.text[len(x.op):].split(",")]
                for r in regs_of(ops[0]): laststore[r] = t
            if x.kind == "ds" and "write" in x.op and ("b128" in x.op or "b96" in x.op):
                pass
            for r in x.writes: lastw[r] = (t, x.kind, x)
            t += x.states()
    return out, added

def resolve_waits(ins):
    vm = []; lg = []
    out = []
    for x in ins:
        if x.kind == "vmem" and not x.nocount: vm.append(x.tag)
        elif x.kind == "ds" and not x.nocount: lg.append(x.tag)
        if x.kind in ("waitvm", "waitlgkm"):
            q = vm if x.kind == "waitvm" else lg
            idx = -1
            for tg in x.tags:
                found = [i for i, v in enumerate(q) if v == tg]
                assert found, f"wait on tag {tg} never issued"
                idx = max(idx, found[-1])
            n = len(q) - 1 - idx
            lim = 63 if x.kind == "waitvm" else 15
            n = min(n, lim)
            nm = "vmcnt" if x.kind == "waitvm" else "lgkmcnt"
            if out and out[-1].op == "s_waitcnt" and nm not in out[-1].text and getattr(out[-1], "merged", False):
                out[-1].text += f" {nm}({n})"
            else:
                y = I(f"s_waitcnt {nm}({n})"); y.merged = True; out.append(y)
            continue
        out.append(x)
    return out

def text_of(ins):
    return "\n".join(("" if x.kind == "label" else "  ") + x.text for x in ins) + "\n"

def check_waits(ins):
    vm = []; lg = []
    errs = 0
    for x in ins:
        if x.op == "s_waitcnt":
            m = re.search(r"vmcnt\((\d+)\)", x.text)
            if m:
                n = int(m.group(1)); vm = vm[len(vm) - n:] if n < len(vm) else vm
                if n == 0: vm = []
            m = re.search(r"lgkmcnt\((\d+)\)", x.text)
            if m:
                n = int(m.group(1)); lg = lg[len(lg) - n:] if n < len(lg) else lg
                if n == 0: lg = []
            continue
        touched = x.reads | x.writes
        for q in (vm, lg):
            for y in q:
                if y.writes & touched:
                    print(f"WAIT ERROR: '{x.text}' touches regs of in-flight '{y.text}'"); errs += 1
        if x.kind == "vmem" and not x.nocount: vm.append(x)
        if x.kind == "ds" and not x.nocount: lg.append(x)
        if len(vm) > 63: print("NOTE: >63 vmem outstanding at", x.text)
    return errs

def hoist_m0(ins):
    ins = list(ins)
    for k in range(1, len(ins) - 1):
        x = ins[k]
        if ("m0", 0) in x.writes and ("m0", 0) in ins[k + 1].reads:
            p = ins[k - 1]
            if p.kind in ("mfma", "valu", "ds") or (p.kind == "vmem" and ("m0", 0) not in p.reads):
                if not (p.writes & x.reads) and not getattr(p, "skip", False):
                    ins[k - 1], ins[k] = x, p
    return ins

def check_m0(ins):
    cur = None; errs = 0
    for x in ins:
        if ("m0", 0) in x.writes: cur = x.text
        if ("m0", 0) in x.reads and x.kind == "vmem":
            if getattr(x, "m0exp", None) != cur:
                print("M0 ERROR:", x.text, "expects", getattr(x, "m0exp", None), "has", cur); errs += 1
    return errs
```

```python
import sys
from asmlib import *

NAME = "gated_mix__linear_attn_block__glu_gated_bilinear__prompt_kernel"
H_OFF, E_OFF, KV_OFF, XB_OFF, WS_SZ = 0, 0x1400000, 0x1480000, 0x1600000, 0x2800000
XS = [0, 32768, 65536]; WS_ = [98304, 114688, 131072]; MISC = 147456
GUB = [MISC + 4096, 98304, 86016]
HCS = [122880, 98304, 73728]
P2S = [0, 36864, 73728, 110592]
EXB = MISC
sX, sQKV, sWO, sWG, sWU, sWD, sGW, sOUT, sDBG, sWS, sGU = [f"s[{a}:{a+3}]" for a in range(4, 48, 4)]
W, MT, N, Q, M2, NT, J, FLAG = 48, 49, 50, 51, 52, 53, 54, 55
T0, T1, T2, T3 = 56, 57, 58, 59
MX, MHC, MQKV, MW1K, MP2 = 60, 61, 62, 63, 64
SOFX = 64
RA, RB, RM, RO = 72, 73, 74, 75
SPIN, NL1K = 76, 77
MASK2 = "s[78:79]"; MASKQ0 = "s[80:81]"
REX, XBS = 82, 83
L = 0
aXd = [1, 2]; aWd = 3; aWtr = [4, 5, 6, 7]; aXr = [8, 9]; aGr = 10; aH = 11
aQKVd, aGUd, aQKVtr, aCtr, aGUtr = 12, 13, 14, 15, 16
aHCd = 17; aHCtr = [18, 19]; vF, vP, vT, vT2 = 20, 21, 22, 23
aWD = list(range(1, 10)); aP2tr = 10; aP2H = 12; aKV = 13; aMisc = 14; aL16 = 15; aE = 16
WF = [24, 32, 40]; GATE = 48; vFV = 51
TH, TK = 90, 91
R = [64 + 16 * i for i in range(10)]
def vr(a, n=4): return f"v[{a}:{a+n-1}]"
def xreg(p, t, i):
    f = 4 * t + i
    return f"a[{32*p+4*f}:{32*p+4*f+3}]" if p < 8 else vr(224 + 4 * f)
MF = "v_mfma_f32_16x16x32_bf16"
LOG2E, EPS = "0x3fb8aa3b", "0x358637bd"

class Gen:
    def __init__(self, opt):
        self.opt = opt; self.tl = Timeline(); self.slow = []; self.nl = 0; self.pro = []
    def lab(self, s): self.nl += 1; return f"L_{s}_{self.nl}"
    def dma(self, vaddr, srd, soff, m0base, m0imm, tag, imm=0, pre=[], setm0=True):
        m0t = f"s_add_u32 m0, s{m0base}, {m0imm}"
        o = [I(m0t)] if setm0 else []
        o += pre
        offs = f" offset:{imm}" if imm else ""
        o.append(I(f"buffer_load_dwordx4 v{vaddr}, {srd}, {soff} offen{offs} lds", tag=tag))
        o[-1].m0exp = m0t
        return o
    def flag_publish(self, val):
        lb = self.lab("nf")
        o = [I(f"s_cmp_lg_u32 s{W}, 0"), I(f"s_cbranch_scc1 {lb}"), I(f"v_mov_b32 v{vFV}, {val}"),
             I("s_mov_b64 exec, 1"), I(f"buffer_store_byte v{vFV}, off, {sDBG}, s{FLAG} sc1", nocount=True),
             I("s_mov_b64 exec, -1"), I(f"{lb}:")]
        for x in o[2:6]: x.skip = True
        return o
    def poll_issue(self, tag):
        return [I(f"buffer_load_ubyte v{vF}, v{vP}, {sDBG}, 0 offen sc1", tag=tag)]
    def poll_check(self, tag, need):
        ok = self.lab("ok"); sl = self.lab("slow"); lp = self.lab("lp")
        self.slow += [I(f"{sl}:"), I(f"s_mov_b32 s{SPIN}, 0x40000"), I(f"{lp}:"), I("s_sleep 1"),
                      I(f"buffer_load_ubyte v{vF}, v{vP}, {sDBG}, 0 offen sc1", nocount=True), I("s_waitcnt vmcnt(0)"),
                      I(f"v_cmp_le_u32 vcc, {need}, v{vF}"), I("s_cmp_eq_u64 vcc, -1"), I(f"s_cbranch_scc1 {ok}"),
                      I(f"s_sub_u32 s{SPIN}, s{SPIN}, 1"), I(f"s_cmp_lg_u32 s{SPIN}, 0"), I(f"s_cbranch_scc1 {lp}"), I(f"s_branch {ok}")]
        return [waitvm(tag), I(f"v_cmp_le_u32 vcc, {need}, v{vF}"), I("s_cmp_eq_u64 vcc, -1"), I(f"s_cbranch_scc0 {sl}"), I(f"{ok}:")]
    def phi(self, r, tmp):
        return [I(f"v_mul_f32 v{tmp}, {LOG2E}, v{r}"), I(f"v_exp_f32_e64 v{tmp}, v{tmp} clamp"),
                I(f"v_max_f32 v{r}, {EPS}, v{r}"), I(f"v_add_f32 v{r}, v{tmp}, v{r}")]
    def phi_block(self, regs, tmps):
        o = []
        for k in range(0, len(regs), len(tmps)):
            rs = regs[k:k + len(tmps)]
            seqs = [self.phi(r, t) for r, t in zip(rs, tmps)]
            for s in range(4):
                for q in seqs: o.append(q[s])
        return o
    def epi_pair(self, g, u, dst, half):
        o = []
        for i in range(4):
            for r in range(4): o.append(I(f"v_mul_f32 v{g+4*i+r}, v{g+4*i+r}, v{u+4*i+r}"))
            for r in range(4): o.append(I(f"v_mul_f32 v{g+4*i+r}, v{g+4*i+r}, v{GATE+4*i+2}"))
            for h in range(2): o.append(I(f"v_cvt_pk_bf16_f32 v{dst+4*i+2*half+h}, v{g+4*i+2*h}, v{g+4*i+2*h+1}"))
        return o
    def hstore(self, data, kk, tag, chunk0=False):
        o = []
        for i in range(4):
            c = H_OFF + i * 40960 + kk * 1024
            o.append([I(f"s_add_u32 s{T3}, s{NL1K}, {c}") if chunk0 else I(f"s_mov_b32 s{T3}, {c}"),
                      I(f"buffer_store_dwordx4 {vr(data+4*i)}, v{aH}, {sWS}, s{T3} offen sc1", tag=tag)])
        return o

    def prologue(self):
        P = self.pro
        A = lambda s, **k: P.extend(I(x, **k) for x in s.strip().split("\n"))
        A(f"s_cmp_ge_u32 s2, 256\ns_cbranch_scc1 L_end")
        A("s_load_dwordx16 s[64:79], s[0:1], 0\ns_load_dwordx4 s[80:83], s[0:1], 64\ns_load_dwordx2 s[84:85], s[0:1], 80")
        A(f"v_lshrrev_b32 v1, 6, v0\nv_and_b32 v{L}, 63, v0\nv_readfirstlane_b32 s{W}, v1")
        A(f"s_lshr_b32 s{J}, s2, 3\ns_and_b32 s{T0}, s2, 1\ns_bfe_u32 s{Q}, s2, 0x20001")
        A(f"s_lshl_b32 s{MT}, s{T0}, 2\ns_and_b32 s{NT}, s{J}, 3\ns_add_u32 s{MT}, s{MT}, s{NT}")
        A(f"s_lshr_b32 s{T1}, s{J}, 2\ns_lshl_b32 s{N}, s{Q}, 3\ns_add_u32 s{N}, s{N}, s{T1}")
        A(f"s_lshl_b32 s{M2}, s{T0}, 3\ns_add_u32 s{M2}, s{M2}, s{T1}")
        A(f"s_lshl_b32 s{FLAG}, s{MT}, 5\ns_add_u32 s{FLAG}, s{FLAG}, s{N}")
        A(f"s_lshl_b32 s{MX}, s{W}, 13\ns_lshl_b32 s{MW1K}, s{W}, 10\ns_mul_i32 s{MQKV}, s{W}, 1008")
        A(f"s_and_b32 s{T0}, s{W}, 1\ns_lshl_b32 s{T0}, s{T0}, 11\ns_lshr_b32 s{T2}, s{W}, 1\ns_lshl_b32 s{T2}, s{T2}, 10\ns_add_u32 s{MHC}, s{T0}, s{T2}")
        A(f"s_lshr_b32 s{T0}, s{N}, 2\ns_mul_i32 s{T0}, s{T0}, 1152\ns_and_b32 s{T2}, s{N}, 3\ns_lshl_b32 s86, s{T2}, 8\ns_add_u32 s86, s86, s{T0}")
        A(f"s_lshl_b32 s87, s{T2}, 5\ns_add_u32 s87, s87, s{T0}\ns_add_u32 s87, s87, 1024")
        A(f"v_lshrrev_b32 v20, 3, v{L}\nv_lshrrev_b32 v21, 4, v{L}\nv_bfe_u32 v22, v{L}, 2, 2\nv_and_b32 v23, 3, v{L}")
        A(f"s_lshl_b32 s{T0}, s{MT}, 8\ns_lshl_b32 s{T2}, s{W}, 6\ns_add_u32 s{T0}, s{T0}, s{T2}")
        A(f"v_add_u32 v24, s{T0}, v20\nv_mul_u32_u24 v24, 1152, v24\nv_and_b32 v25, 7, v{L}\nv_xor_b32 v26, v25, v21\nv_lshl_add_u32 v{aXd[0]}, v26, 4, v24\nv_xor_b32 v{aXd[1]}, 64, v{aXd[0]}")
        A(f"s_lshl_b32 s{T0}, s{W}, 3\nv_add_u32 v24, s{T0}, v20\nv_mul_u32_u24 v24, 9216, v24\nv_add_u32 v24, s86, v24")
        A(f"s_and_b32 s{T0}, s{W}, 1\ns_lshl_b32 s{T0}, s{T0}, 1\nv_and_b32 v26, 1, v21\nv_or_b32 v26, s{T0}, v26\nv_lshrrev_b32 v27, 1, v25\nv_xor_b32 v26, v26, v27")
        A(f"v_lshl_add_u32 v24, v26, 5, v24\nv_and_b32 v28, 1, v{L}\nv_lshl_add_u32 v{aWd}, v28, 4, v24")
        P.append(I("s_waitcnt lgkmcnt(0)"))
        def srd(dst, lo, size):
            d = int(dst[2:dst.index(":")])
            A(f"s_mov_b32 s{d}, s{lo}\ns_and_b32 s{d+1}, s{lo+1}, 0xffff\ns_mov_b32 s{d+2}, {size}\ns_mov_b32 s{d+3}, 0x20000")
        srd(sX, 64, 2359296); srd(sWG, 72, 5308416); srd(sWU, 74, 5308416); srd(sGW, 78, 1152)
        srd(sQKV, 66, 1990656); srd(sWD, 76, 5308416); srd(sOUT, 80, 2359296); srd(sDBG, 82, 256); srd(sWS, 84, WS_SZ)
        A(f"s_sub_u32 s12, s68, 18432\ns_subb_u32 s13, s69, 0\ns_and_b32 s13, s13, 0xffff\ns_mov_b32 s14, {663552+18432}\ns_mov_b32 s15, 0x20000")
        A(f"s_bitcmp1_b32 s{W}, 0\ns_cselect_b32 s44, s20, s16\ns_cselect_b32 s45, s21, s17\ns_mov_b32 s46, 5308416\ns_mov_b32 s47, 0x20000")
        for b in range(1, 8): A(f"s_mov_b32 s{SOFX+b}, {9216*b}")
        P.extend(sum(self.wA_batch(0), [])); P.extend(sum(self.x_batch(0), []))
        P.extend([I(f"v_lshlrev_b32 v24, 4, v{L}")] + self.dma(24, sGW, f"s{MW1K}", MW1K, MISC, "gw"))
        P.extend(sum(self.x_batch(1), [])); P.extend(sum(self.wA_batch(1), []))
        if self.opt.get("codepf", 1):
            A(f"s_getpc_b64 s[88:89]\nL_pc:\nv_lshlrev_b32 v25, 7, v{L}\ns_lshl_b32 s{T0}, s{W}, 13\nv_add_u32 v25, s{T0}, v25")
            A(f"v_add_u32 v26, 32768, v25\nv_min_u32 v25, L_end-L_pc, v25\nv_min_u32 v26, L_end-L_pc, v26")
            P.append(I("global_load_dword v224, v25, s[88:89]", tag="pf")); P.append(I("global_load_dword v225, v26, s[88:89]", tag="pf"))
        P.extend(sum(self.x_batch(2), [])); P.extend(sum(self.wA_batch(2), []))
        t = 29
        A(f"v_lshl_add_u32 v29, v21, 3, v22\nv_lshlrev_b32 v30, 7, v29\nv_lshl_add_u32 v30, v23, 3, v30\nv_add_u32 v30, {WS_[0]}, v30")
        A(f"v_lshrrev_b32 v31, 1, v22\nv_and_b32 v32, 1, v21\nv_lshl_or_b32 v31, v32, 1, v31")
        for k in range(4): A(f"v_xor_b32 v33, {k}, v31\nv_lshl_add_u32 v{aWtr[k]}, v33, 5, v30")
        A(f"v_and_b32 v33, 15, v{L}\nv_lshrrev_b32 v34, 1, v33\nv_xor_b32 v34, v34, v21\nv_lshlrev_b32 v35, 7, v33\nv_add_u32 v35, s{MX}, v35")
        A(f"v_lshl_add_u32 v{aXr[0]}, v34, 4, v35\nv_xor_b32 v{aXr[1]}, 64, v{aXr[0]}")
        A(f"v_lshlrev_b32 v{aGr}, 4, v21\nv_add_u32 v{aGr}, {MISC}, v{aGr}")
        A(f"s_lshl_b32 s{T0}, s{Q}, 7\ns_lshl_b32 s{T2}, s{MT}, 4\ns_add_u32 s{T0}, s{T0}, s{T2}\ns_lshl_b32 s{T2}, s{W}, 2\ns_add_u32 s{T0}, s{T0}, s{T2}")
        A(f"s_mul_i32 s{T0}, s{T0}, 40960\ns_and_b32 s{NL1K}, s{N}, 7\ns_lshl_b32 s{NL1K}, s{NL1K}, 10\ns_add_u32 s{T0}, s{T0}, s{NL1K}\nv_lshl_add_u32 v{aH}, v{L}, 4, s{T0}")
        A(f"v_mul_u32_u24 v34, 7282, v{L}\nv_lshrrev_b32 v34, 16, v34\nv_mul_u32_u24 v35, 9, v34\nv_sub_u32 v35, v{L}, v35")
        A(f"v_mul_u32_u24 v36, 21846, v35\nv_lshrrev_b32 v36, 16, v36\nv_mul_u32_u24 v37, 3, v36\nv_sub_u32 v37, v35, v37")
        A(f"v_mul_u32_u24 v34, 3456, v34\nv_mul_u32_u24 v36, 1152, v36\nv_lshlrev_b32 v37, 4, v37\nv_add3_u32 v34, v34, v36, v37")
        A(f"s_mul_i32 s{T0}, s{W}, 24192\ns_mul_i32 s{T2}, s{N}, 36\ns_add_u32 s{T0}, s{T0}, s{T2}\nv_add_u32 v{aQKVd}, s{T0}, v34")
        A(f"v_lshrrev_b32 v34, 5, v{L}\nv_bfe_u32 v35, v{L}, 3, 2\nv_bfe_u32 v36, v{L}, 1, 2\nv_lshl_add_u32 v36, v34, 2, v36\nv_lshl_add_u32 v36, v35, 3, v36")
        A(f"s_lshr_b32 s{T0}, s{W}, 1\ns_lshl_b32 s{T0}, s{T0}, 5\nv_add_u32 v36, s{T0}, v36\nv_mul_u32_u24 v36, 9216, v36\nv_add_u32 v36, s87, v36\nv_and_b32 v37, 1, v{L}\nv_lshl_add_u32 v{aGUd}, v37, 4, v36")
        A(f"v_mul_u32_u24 v34, 144, v29\nv_lshl_add_u32 v{aQKVtr}, v23, 3, v34")
        A(f"v_mul_u32_u24 v35, 48, v23\nv_add_u32 v35, 80, v35\nv_cmp_gt_u32 vcc, 2, v23\nv_mov_b32 v36, 32\nv_cndmask_b32 v35, v36, v35, vcc\nv_add_u32 v{aCtr}, v34, v35")
        A(f"v_lshlrev_b32 v{aGUtr}, 3, v{L}\nv_add_u32 v{aGUtr}, {GUB[0]}, v{aGUtr}")
        A(f"s_lshr_b32 s{T0}, s{W}, 1\ns_lshl_b32 s{T0}, s{T0}, 2\nv_add_u32 v34, s{T0}, v29\nv_mul_u32_u24 v34, 9216, v34\ns_add_u32 s{T0}, s86, 128\nv_add_u32 v34, s{T0}, v34")
        A(f"v_lshrrev_b32 v35, 1, v23\nv_xor_b32 v35, v35, v32\nv_lshl_add_u32 v34, v35, 5, v34\nv_lshl_add_u32 v{aHCd}, v37, 4, v34")
        A(f"v_lshrrev_b32 v34, 2, v{L}\nv_lshlrev_b32 v34, 6, v34\nv_lshl_add_u32 v34, v23, 3, v34\nv_add_u32 v34, {HCS[0]}, v34")
        A(f"v_lshl_add_u32 v{aHCtr[0]}, v32, 5, v34\nv_xor_b32 v{aHCtr[1]}, 32, v{aHCtr[0]}")
        A(f"v_cmp_eq_u32 {MASK2}, 2, v23\ns_mov_b32 s80, 0xffff\ns_mov_b32 s81, 0")
        A(f"s_mul_i32 s{MP2}, s{W}, 9216")
        A(f"s_mul_i32 s{T0}, s{Q}, {1152*1152}\ns_lshr_b32 s{T1}, s{W}, 1\ns_mul_i32 s{T1}, s{T1}, {128*1152}\ns_and_b32 s{T2}, s{W}, 1\ns_mul_i32 s{T2}, s{T2}, {32*1152}")
        A(f"s_add_u32 s{RA}, s{T0}, s{T1}\ns_add_u32 s{RA}, s{RA}, s{T2}")
        A(f"s_mul_i32 s{T1}, s{W}, {128*1152}\ns_add_u32 s{RB}, s{T0}, s{T1}\ns_mul_i32 s{T1}, s{W}, {16*1152}\ns_add_u32 s{RM}, s{T0}, s{T1}")
        A(f"s_lshl_b32 s{T1}, s{Q}, 3\ns_add_u32 s{T1}, s{T1}, s{W}\ns_mul_i32 s{RO}, s{T1}, {18*1152}")
        A(f"s_lshl_b32 s{T1}, s{Q}, 3\ns_lshl_b32 s{T2}, s{W}, 1\ns_add_u32 s{T1}, s{T1}, s{T2}\ns_mul_i32 s{REX}, s{T1}, {18*1152}")
        P.append(waitvm("x0"))
        P.extend(sum(self.x_reads(0), []))
        P.append(waitvm("w0", "gw", "pf") if self.opt.get("codepf", 1) and False else waitvm("w0", "gw")); P.append(I("s_barrier"))
    def x_batch(self, p):
        o = []
        for b in range(8):
            so = f"s{SOFX+b}" if b else "0"
            o.append(self.dma(aXd[b & 1], sX, so, MX, XS[p % 3] + b * 1024, f"x{p}"))
        o[-1] = o[-1] + [I(f"v_add_u32 v{aXd[0]}, 128, v{aXd[0]}"), I(f"v_add_u32 v{aXd[1]}, 128, v{aXd[1]}")]
        return o
    def wA_batch(self, p):
        o = []
        for h in range(2):
            for m, srd in ((0, sWG), (1, sWU)):
                b = [I(f"s_mov_b32 s{T0+h}, {(64*p+32*h)*9216}")] if m == 0 else []
                o.append(self.dma(aWd, srd, f"s{T0+h}", MW1K, WS_[p % 3] + m * 8192 + h * 4096, f"w{p}", pre=b))
        return o
    def x_reads(self, p):
        o = []
        for t in range(2):
            for i in range(4):
                o.append([I(f"ds_read_b128 {xreg(p,t,i)}, v{aXr[t]} offset:{i*2048}", tag=f"xr{p}")])
        d = XS[(p + 1) % 3] - XS[p % 3]
        op = f"v_add_u32 v%d, {d}, v%d" if d > 0 else f"v_subrev_u32 v%d, {-d}, v%d"
        o[-1] = o[-1] + [I(op % (aXr[0], aXr[0])), I(op % (aXr[1], aXr[1]))]
        return o
    def qkv_batch(self, ss):
        o = []
        for jj in range(7):
            j = 7 * ss + jj
            o.append(self.dma(aQKVd, sQKV, f"s{T2}", MQKV, 4032 * j, f"qs{ss}", pre=[I(f"s_mov_b32 s{T2}, {96768*j}"), I("s_mov_b32 exec_hi, 0x7fffffff")]) + [I("s_mov_b32 exec_hi, -1")])
            if jj in (1, 3, 5):
                kp = 3 * ss + jj // 2
                o.append(self.dma(aGUd, sGU, f"s{T2}", MW1K, GUB[ss] + (kp % 3) * 4096, f"qs{ss}", pre=[I(f"s_mov_b32 s{T2}, {kp*64*9216}")]))
        return o
    def hc_batch(self, hs):
        o = []
        for k6 in range(6):
            ks = 6 * (hs % 3) + k6
            o.append(self.dma(aHCd, sGU, f"s{T2}", MHC, HCS[hs % 3] + k6 * 4096, f"hc{hs}", pre=[I(f"s_mov_b32 s{T2}, {ks*32*9216 + (hs//3)*64}")]))
        return o
    def wd_batch(self, st):
        o = []
        if st < 4: pre = [I(f"s_add_u32 s{T0}, s{RA}, {(576*(st>>1)+256*(st&1))*1152}")]
        elif st < 6: pre = [I(f"s_add_u32 s{T0}, s{RB}, {(576*(st-4)+64)*1152}")]
        elif st < 8: pre = [I(f"s_add_u32 s{T0}, s{RM}, {(576*(st-6)+512)*1152}"), I(f"s_add_u32 s{T1}, s{RO}, {4*(st-6)*18*1152}")]
        else: pre = [I(f"s_add_u32 s{T0}, s{RB}, {(576*(st-8)+96)*1152}")]
        for j in range(9):
            m0 = P2S[st % 4] + (j // 4) * 4096; sm = j % 4 == 0
            imm = (j % 4) * 1024
            tag = f"wd{st}"
            if 6 <= st < 8 and j == 4:
                b = self.dma(aWD[j], sWD, f"s{T0}", MP2, m0, tag, imm, pre=[I("s_mov_b32 exec_hi, 0")]) + \
                    self.dma(aWD[j], sWO, f"s{T1}", MP2, m0, tag, imm, pre=[I("s_mov_b32 exec_hi, -1"), I("s_mov_b32 exec_lo, 0")], setm0=False) + [I("s_mov_b32 exec_lo, -1")]
            elif 6 <= st < 8 and j > 4: b = self.dma(aWD[j], sWO, f"s{T1}", MP2, m0, tag, imm, setm0=sm)
            else: b = self.dma(aWD[j], sWD, f"s{T0}", MP2, m0, tag, imm, pre=pre, setm0=sm)
            o.append(b); pre = []
        return o
    def hreg(self, st, k, i): b = 32 * (st % 8) + 16 * i + 4 * k; return f"a[{b}:{b+3}]"
    def h_batch(self, st):
        o = []
        for i in range(2):
            for k in range(4):
                pre = [I(f"s_mov_b32 s{TH}, {H_OFF + st*4096 + i*40960}")] if k == 0 else []
                o.append(pre + [I(f"buffer_load_dwordx4 {self.hreg(st,k,i)}, v{aP2H}, {sWS}, s{TH} offen offset:{k*1024} sc1", tag=f"h{st}")])
        return o

    def group(self, acc, buf, p, first, x_is_a, reads, tag):
        tl = self.tl; base = tl.n()
        for k, rd in enumerate(reads):
            rd.tag = tag; tl.at(base - 16 + 0.5 + k, rd)
        tl.at(base - 0.01, waitlgkm(tag))
        for i in range(4):
            for t in range(2):
                w = vr(buf + 4 * t); x = xreg(p, t, i); d = vr(acc + 4 * i)
                c = "0" if (first and t == 0) else d
                tl.mfma(I(f"{MF} {d}, {x}, {w}, {c}" if x_is_a else f"{MF} {d}, {w}, {x}, {c}"))
        return base
    def trs(self, buf, addr, offs):
        return [I(f"ds_read_b64_tr_b16 {vr(buf+2*k,2)}, v{addr} offset:{o}") for k, o in enumerate(offs)]

    def build(self):
        tl = self.tl; opt = self.opt
        self.prologue()
        G = 0
        A0 = tl.n()
        tl.spread(A0 + 0, A0 + 60, self.x_batch(3))
        for p in range(9):
            s0 = tl.n()
            for g in range(9):
                buf = WF[G % 3]
                if g == 0:
                    rd = [I(f"ds_read_b128 {vr(buf+4*t)}, v{aGr} offset:{p*128+t*64}") for t in range(2)]
                    self.group(GATE, buf, p, p == 0, False, rd, f"A{p}_{g}")
                else:
                    tile, mat = (g - 1) // 2, (g - 1) % 2
                    offs = [(p % 3) * 16384 + mat * 8192 + ks * 4096 + i * 512 for ks in range(2) for i in range(2)]
                    self.group(R[g - 1], buf, p, p == 0, False, self.trs(buf, aWtr[tile], offs), f"A{p}_{g}")
                G += 1
            if p < 8:
                tl.at(s0 - 0.005 + 4, waitvm(f"x{p+1}"))
                tl.spread(s0 + 4, s0 + 48, self.x_reads(p + 1))
                tl.at(s0 + 64 - 0.005, [waitvm(f"w{p+1}"), I("s_barrier")])
                nxt = []
                if p + 3 <= 8: nxt += self.wA_batch(p + 3)
                if p + 4 <= 8: nxt += self.x_batch(p + 4)
                if p == 5: nxt += self.qkv_batch(0)[:4]
                if p == 6: nxt += self.qkv_batch(0)[4:]
                if p == 7: nxt += self.qkv_batch(1)[:5]
                tl.spread(s0 + 64, s0 + 64 + 70, nxt)
        s8 = A0 + 8 * 72
        sg = []
        for i in range(4): sg.append(I(f"v_mul_f32 v{GATE+4*i}, 0xbfb8aa3b, v{GATE+4*i}"))
        for i in range(4): sg.append(I(f"v_exp_f32 v{GATE+4*i}, v{GATE+4*i}"))
        for i in range(4): sg.append(I(f"v_add_f32 v{GATE+4*i}, 1.0, v{GATE+4*i}"))
        for i in range(4): sg.append(I(f"v_rcp_f32 v{GATE+4*i+1}, v{GATE+4*i}"))
        for i in range(4): sg.append(I(f"v_sub_f32 v{GATE+4*i+2}, 1.0, v{GATE+4*i+1}"))
        tl.spread(s8 + 11, s8 + 24, sg)
        for j in range(4):
            tl.spread(s8 + 8 * (2 * j + 3) + 2, s8 + 8 * (2 * j + 5) + 2, self.epi_pair(R[2 * j], R[2 * j + 1], R[1 + 4 * (j // 2)], j % 2))
        tl.spread(s8 + 8 * 7 + 2.5, s8 + 8 * 9 + 4, self.hstore(R[1], 0, "hs0", True))
        tl.spread(s8 + 8 * 11 + 2.5, s8 + 8 * 13 + 4, self.hstore(R[5], 1, "hs0", True))
        B0 = tl.n()
        tl.at(B0 - 16 - 0.005, [waitvm("qs0"), I("s_barrier")])
        accB = [R[0], R[1], R[2], R[3], R[4], R[8]]
        for kp in range(9):
            ss = kp // 3
            for g in range(6):
                buf = WF[G % 3]
                if g < 4:
                    a = aQKVtr if g < 3 else aCtr
                    offs = [((kp % 3) * 64 + ks * 32 + i * 4) * 144 + (48 * g if g < 3 else 0) for ks in range(2) for i in range(2)]
                else:
                    a = aGUtr
                    offs = [(((kp % 3) * 2 + ks) * 2 + (g - 4)) * 1024 + i * 512 for ks in range(2) for i in range(2)]
                b = self.group(accB[g], buf, kp, kp == 0, g in (1, 2, 3), self.trs(buf, a, offs), f"B{kp}_{g}")
                if kp % 3 == 2 and kp < 8:
                    if g == 2: tl.at(b - 16 + 4.6, I(f"v_add_u32 v{aQKVtr}, {192*144}, v{aQKVtr}"))
                    if g == 3: tl.at(b - 16 + 4.6, I(f"v_add_u32 v{aCtr}, {192*144}, v{aCtr}"))
                    if g == 5:
                        d = GUB[ss + 1] - GUB[ss]
                        tl.at(b - 16 + 4.6, I(f"v_add_u32 v{aGUtr}, {d}, v{aGUtr}" if d > 0 else f"v_subrev_u32 v{aGUtr}, {-d}, v{aGUtr}"))
                G += 1
        tl.spread(B0 - 8, B0 + 64, self.qkv_batch(1)[5:])
        tl.spread(B0 + 64, B0 + 210, self.qkv_batch(2))
        tl.at(B0 + 128 - 0.005, [waitvm("qs1", "hs0"), I("s_barrier")] + self.flag_publish(1))
        tl.spread(B0 + 210, B0 + 270, self.hc_batch(0))
        tl.at(B0 + 272 - 0.005, [waitlgkm("B5_5"), waitvm("qs2"), I("s_barrier")])
        tl.spread(B0 + 272, B0 + 360, self.hc_batch(1))
        pc = []
        for j in range(9):
            pc += [I(f"v_add_u32 v{vT}, {64*j}, v{L}"), I(f"v_mul_u32_u24 v{vT2}, 3641, v{vT}"), I(f"v_lshrrev_b32 v{vT2}, 16, v{vT2}"),
                   I(f"v_mul_u32_u24 v{aWD[j]}, 18, v{vT2}"), I(f"v_sub_u32 v{vT}, v{vT}, v{aWD[j]}"), I(f"v_mul_u32_u24 v{vT2}, 1152, v{vT2}"),
                   I(f"v_lshl_add_u32 v{vT}, v{vT}, 4, v{vT2}"), I(f"s_mul_i32 s{T3}, s{NT}, 288"), I(f"s_sub_u32 s{T3}, s{T3}, {(j%4)*1024}"),
                   I(f"v_add_u32 v{aWD[j]}, s{T3}, v{vT}")]
        pc += [I(f"v_lshrrev_b32 v{vT}, 2, v{L}"), I(f"v_mul_u32_u24 v{vT}, 288, v{vT}"), I(f"v_and_b32 v{vT2}, 3, v{L}"), I(f"v_lshl_add_u32 v{aP2tr}, v{vT2}, 3, v{vT}")]
        pcb = []; k = 0
        while k < len(pc):
            if pc[k].op == "s_mul_i32": pcb.append(pc[k:k + 3]); k += 3
            else: pcb.append([pc[k]]); k += 1
        tl.spread(B0 + 130, B0 + 400, pcb)
        C0 = tl.n()
        tl.at(C0 - 16 - 0.005, [waitlgkm("B8_5"), waitvm("hc0"), I("s_barrier")])
        accC = [[R[5], R[6], R[7], R[9]], [R[1], R[2], R[3], R[8]]]
        for hc in range(2):
            for kp in range(9):
                hs = 3 * hc + kp // 3
                for g in range(4):
                    buf = WF[G % 3]; tile, mat = g // 2, g % 2
                    offs = [((kp % 3) * 2 + ks) * 4096 + mat * 2048 + i * 1024 for ks in range(2) for i in range(2)]
                    b = self.group(accC[hc][g], buf, kp, kp == 0, False, self.trs(buf, aHCtr[tile], offs), f"C{hc}_{kp}_{g}")
                    if kp % 3 == 2 and mat == 1 and hs < 5:
                        d = HCS[(hs + 1) % 3] - HCS[hs % 3]; a = aHCtr[tile]
                        tl.at(b - 16 + 4.6, I(f"v_add_u32 v{a}, {d}, v{a}" if d > 0 else f"v_subrev_u32 v{a}, {-d}, v{a}"))
                    G += 1
        CB = lambda hs: C0 + 96 * hs - 16
        Kb, Vb, Cb, Qb, G8, U8 = R[1], R[2], R[3], R[0], R[4], R[8]
        cst = [[I(f"s_lshl_b32 s{T3}, s{W}, 12"), I(f"s_add_u32 s{T3}, s{T3}, {MISC}"), I(f"v_lshl_add_u32 v{aMisc}, v{L}, 4, s{T3}")],
               [I(f"v_lshlrev_b32 v{aL16}, 4, v{L}")],
               [I(f"s_lshl_b32 s{T3}, s{W}, 12"), I(f"s_add_u32 s{T3}, s{T3}, {MISC}"), I(f"v_and_b32 v{vT}, 1, v{L}"), I(f"v_lshlrev_b32 v{vT}, 8, v{vT}"),
                I(f"v_and_b32 v{vT2}, 48, v{L}"), I(f"v_add3_u32 v{vT}, v{vT}, v{vT2}, s{T3}"), I(f"v_and_b32 v{vT2}, 15, v{L}"), I(f"v_lshl_add_u32 v{vT2}, v{vT2}, 2, s{T3}")]]
        tw = [I("s_mov_b32 exec_lo, 0x03000300"), I("s_mov_b32 exec_hi, 0x03000300")] + \
             [I(f"ds_write_b128 v{vT}, {vr(Cb+4*i)} offset:{64*i}", tag="tw") for i in range(4)] + [I("s_mov_b64 exec, -1")]
        k1 = cst + [tw]
        tmps = [aQKVd, aE]
        k1 += [[x] for x in self.phi_block([Kb + r for r in range(16)], tmps)]
        k1 += [[I(f"v_cvt_pk_bf16_f32 v{Kb+r}, v{Kb+2*r}, v{Kb+2*r+1}")] for r in range(8)]
        k1 += [[I(f"v_cvt_pk_bf16_f32 v{Vb+r}, v{Vb+2*r}, v{Vb+2*r+1}")] for r in range(8)]
        k1 += [[I(f"v_mov_b32 v{aKV}, 0x3f803f80")]]
        for r in range(8):
            k1 += [[I(f"v_cvt_pk_bf16_f32 v{Vb+8+r}, v{Cb+2*r}, v{Cb+2*r+1}")], [I(f"v_cndmask_b32_e64 v{Vb+8+r}, v{Vb+8+r}, v{aKV}, {MASK2}")]]
        k1 += [[waitlgkm("tw")]]
        k1 += [[x] for x in self.phi_block([Cb + r for r in range(16)], tmps)]
        k1 += [[I(f"v_cvt_pk_bf16_f32 v{Cb+r}, v{Cb+2*r}, v{Cb+2*r+1}")] for r in range(8)]
        D = [Kb + 8, Kb + 12, Cb + 8, Cb + 12]
        for j in range(2):
            for d, (a, b) in zip(D, ((Kb, Vb), (Kb, Vb + 8), (Cb, Vb), (Cb, Vb + 8))):
                k1.append([I(f"{MF} {vr(d)}, {vr(a+4*j)}, {vr(b+4*j)}, {'0' if j == 0 else vr(d)}")])
        tl.spread(C0 + 1, C0 + 160, k1)
        h8 = self.epi_pair(G8, U8, G8, 0)
        tl.spread(C0 + 120, C0 + 160, h8)
        for i in range(4):
            tl.at(C0 + 160.2 + i * 0.1, I(f"ds_read2_b32 {vr(U8+2*i,2)}, v{vT2} offset0:{16*i} offset1:{64+16*i}", tag="tr"))
        tl.at(C0 + 168.5, [waitlgkm("tr")] + [I(f"ds_write_b128 v{aMisc}, {vr(D[t])} offset:{1024*t}", tag="kw") for t in range(4)])
        tl.spread(CB(0), CB(0) + 90, self.hc_batch(2))
        tl.at(CB(1) - 0.005, [waitlgkm("C0_2_3"), waitvm("hc1"), I("s_barrier")])
        tl.spread(CB(1), CB(1) + 90, self.hc_batch(3) + self.wd_batch(0)[:4])
        tl.at(CB(2) - 0.005, [waitlgkm("C0_5_3", "kw"), waitvm("hc2"), I("s_barrier")])
        red = [[I(f"s_lshl_b32 s{T3}, s{W}, 10"), I(f"s_add_u32 s{T3}, s{T3}, {MISC}"), I(f"v_add_u32 v{vT}, s{T3}, v{aL16}")]]
        red += [[I(f"ds_read_b128 {vr(Vb+4*a)}, v{vT} offset:{4096*a}", tag="kr")] for a in range(4)]
        tl.spread(CB(2) + 4.2, CB(2) + 8, red)
        red2 = [[waitlgkm("kr")]]
        for a in range(1, 4):
            red2 += [[I(f"v_add_f32 v{Vb+r}, v{Vb+r}, v{Vb+4*a+r}")] for r in range(4)]
        red2 += [[I(f"s_lshl_b32 s{T3}, s{N}, 3"), I(f"s_add_u32 s{T3}, s{T3}, s{MT}"), I(f"s_lshl_b32 s{T3}, s{T3}, 12"), I(f"s_add_u32 s{T3}, s{T3}, s{MW1K}"), I(f"s_add_u32 s{T3}, s{T3}, {KV_OFF}"),
                  I(f"buffer_store_dwordx4 {vr(Vb)}, v{aL16}, {sWS}, s{T3} offen sc1", tag="kvs")]]
        tl.spread(CB(2) + 20, CB(2) + 30, red2)
        tl.spread(CB(2) + 2, CB(2) + 92, self.hc_batch(4) + self.wd_batch(0)[4:])
        q1 = [[x] for x in self.phi_block([Qb + r for r in range(16)], tmps)]
        q1 += [[x] for x in self.phi_block([U8 + r for r in range(8)], tmps)]
        for i in range(4):
            q1 += [[I(f"v_cvt_pk_bf16_f32 v{Qb+4*i}, v{Qb+4*i}, v{Qb+4*i+1}")], [I(f"v_cvt_pk_bf16_f32 v{Qb+4*i+1}, v{Qb+4*i+2}, v{Qb+4*i+3}")],
                   [I(f"v_cvt_pk_bf16_f32 v{Qb+4*i+2}, v{U8+2*i}, v{U8+2*i+1}")], [I(f"v_cndmask_b32_e64 v{Qb+4*i+2}, 0, v{Qb+4*i+2}, {MASKQ0}")], [I(f"v_mov_b32 v{Qb+4*i+3}, 0")]]
        tl.spread(CB(2) + 32, C0 + 286, q1)
        C1 = C0 + 288
        tl.at(CB(3) - 0.005, [waitlgkm("C0_8_3"), waitvm("hc3", "kvs"), I("s_barrier")] + self.flag_publish(2))
        tl.spread(CB(3) + 2, CB(3) + 92, self.hc_batch(5) + self.wd_batch(1)[:4])
        e0 = [[x] for x in self.epi_pair(R[5], R[6], R[6], 0) + self.epi_pair(R[7], R[9], R[6], 1)]
        tl.spread(C1 + 1, C1 + 60, e0)
        tl.spread(C1 + 60, C1 + 76, self.hstore(R[6], 16, "hs1"))
        tl.at(C1 + 0.5, [I(f"s_lshl_b32 s{T3}, s{Q}, 7"), I(f"s_lshl_b32 s{XBS}, s{M2}, 3"), I(f"s_add_u32 s{T3}, s{T3}, s{XBS}"), I(f"s_lshl_b32 s{XBS}, s{W}, 1"),
                         I(f"s_add_u32 s{T3}, s{T3}, s{XBS}"), I(f"s_mul_i32 s{T3}, s{T3}, 40960"), I(f"v_add_u32 v{aP2H}, s{T3}, v{aL16}")])
        hpoll = [I(f"s_lshr_b32 s{T3}, s{M2}, 1"), I(f"s_lshl_b32 s{T3}, s{T3}, 5"), I(f"s_lshl_b32 s{XBS}, s{Q}, 3"), I(f"s_add_u32 s{T3}, s{T3}, s{XBS}"),
                 I(f"v_and_b32 v{vP}, 7, v{L}"), I(f"v_add_u32 v{vP}, s{T3}, v{vP}")]
        tl.at(C1 + 8.5, hpoll + self.poll_issue("p1"))
        tl.at(C1 + 40.5, self.poll_check("p1", 1) + [I(f"v_and_b32 v{vP}, 7, v{L}"), I(f"v_lshlrev_b32 v{vP}, 5, v{vP}"), I(f"v_add_u32 v{vP}, s{N}, v{vP}")])
        tl.at(C1 + 56.5, self.poll_issue("p2"))
        tl.at(CB(4) - 0.005, [waitlgkm("C1_2_3"), waitvm("hc4"), I("s_barrier")])
        tl.at(CB(4) + 0.5, self.poll_check("p2", 2))
        kvl = []
        for m in range(8):
            dst = (R[5] if m < 4 else R[7]) + 4 * (m % 4)
            pre = [I(f"s_lshl_b32 s{TK}, s{N}, 15"), I(f"s_add_u32 s{TK}, s{TK}, s{MW1K}")] if m == 0 else []
            kvl.append(pre + [I(f"s_add_u32 s{T3}, s{TK}, {KV_OFF + 4096*m}"), I(f"buffer_load_dwordx4 {vr(dst)}, v{aL16}, {sWS}, s{T3} offen sc1", tag="kvl")])
        tl.spread(CB(4) + 1, CB(4) + 30, kvl)
        tl.spread(CB(4) + 30, CB(4) + 92, self.h_batch(0) + self.wd_batch(1)[4:])
        sm = [[waitvm("kvl")]]
        for m in range(1, 8):
            src = (R[5] if m < 4 else R[7]) + 4 * (m % 4)
            sm += [[I(f"v_add_f32 v{R[5]+r}, v{R[5]+r}, v{src+r}")] for r in range(4)]
        sm += [[I(f"s_lshl_b32 s{T3}, s{W}, 10"), I(f"s_add_u32 s{T3}, s{T3}, {MISC}"), I(f"v_add_u32 v{vT}, s{T3}, v{aL16}"), I(f"ds_write_b128 v{vT}, {vr(R[5])}", tag="sw")]]
        tl.spread(CB(4) + 66, CB(4) + 90, sm)
        tl.at(CB(5) - 0.005, [waitlgkm("C1_5_3", "sw"), waitvm("hc5", "hs1"), I("s_barrier")] + self.flag_publish(3))
        tl.at(CB(5) + 4.2, [I(f"v_add_u32 v{vT}, {MISC}, v{aL16}")] + [I(f"ds_read_b128 {vr(R[9]+4*t)}, v{vT} offset:{1024*t}", tag="sr") for t in range(4)])
        nm = [[waitlgkm("sr")]]
        for a, (t0, t1) in enumerate(((0, 2), (1, 3))):
            for h, t in enumerate((t0, t1)):
                for z in range(2):
                    nm.append([I(f"v_cvt_pk_bf16_f32 v{R[7]+4*a+2*h+z}, v{R[9]+4*t+2*z}, v{R[9]+4*t+2*z+1}")])
        for i in range(4):
            nm.append([I(f"{MF} {vr(R[9]+4*i)}, {vr(R[7]+4)}, {vr(Qb+4*i)}, 0")])
            nm.append([I(f"{MF} {vr(R[5]+4*i)}, {vr(R[7])}, {vr(Qb+4*i)}, 0")])
        tl.spread(CB(5) + 20, CB(5) + 36, nm)
        fo = []
        for i in range(4): fo.append([I(f"v_add_f32 v{R[9]+4*i+2}, {EPS}, v{R[9]+4*i+2}")])
        for i in range(4): fo.append([I(f"v_rcp_f32 v{R[9]+4*i+2}, v{R[9]+4*i+2}")])
        for i in range(4): fo.append([I(f"v_mul_f32 v{R[9]+4*i+2}, v{R[9]+4*i+2}, v{GATE+4*i+1}")])
        for i in range(4):
            for r in range(4): fo.append([I(f"v_mul_f32 v{R[5]+4*i+r}, v{R[5]+4*i+r}, v{R[9]+4*i+2}")])
            for r in range(2): fo.append([I(f"v_mul_f32 v{R[9]+4*i+r}, v{R[9]+4*i+r}, v{R[9]+4*i+2}")])
            for h in range(2): fo.append([I(f"v_cvt_pk_bf16_f32 v{G8+4*i+2+h}, v{R[5]+4*i+2*h}, v{R[5]+4*i+2*h+1}")])
            fo.append([I(f"v_cvt_pk_bf16_f32 v{R[9]+4*i}, v{R[9]+4*i}, v{R[9]+4*i+1}")])
        fo.append([I(f"s_lshl_b32 s{T3}, s{Q}, 7"), I(f"s_lshl_b32 s{XBS}, s{MT}, 4"), I(f"s_add_u32 s{T3}, s{T3}, s{XBS}"), I(f"s_lshl_b32 s{XBS}, s{W}, 2"), I(f"s_add_u32 s{T3}, s{T3}, s{XBS}"),
                   I(f"s_lshl_b32 s{T3}, s{T3}, 9"), I(f"s_bfe_u32 s{XBS}, s{N}, 0x20001"), I(f"s_lshl_b32 s{XBS}, s{XBS}, 7"), I(f"s_add_u32 s{T3}, s{T3}, s{XBS}"),
                   I(f"s_and_b32 s{XBS}, s{N}, 1"), I(f"s_lshl_b32 s{XBS}, s{XBS}, 2"), I(f"s_add_u32 s{T3}, s{T3}, s{XBS}"), I(f"s_add_u32 s{T3}, s{T3}, {E_OFF}"),
                   I(f"v_and_b32 v{aE}, 15, v{L}"), I(f"v_lshl_add_u32 v{aE}, v{aE}, 3, s{T3}")])
        fo += self.hstore(G8, 24, "hs2")
        fo.append([I("s_mov_b32 exec_lo, 0xffff0000"), I("s_mov_b32 exec_hi, 0")] +
                  [I(f"buffer_store_dword v{R[9]+4*i}, v{aE}, {sWS}, 0 offen offset:{512*i} sc1", tag="hs2") for i in range(4)] + [I("s_mov_b64 exec, -1")])
        tl.spread(CB(5) + 40, CB(5) + 92, fo)
        tl.spread(CB(5) + 2, CB(5) + 90, self.h_batch(1))
        D0 = tl.n()
        WFD = [R[6], R[0], 24]
        accreg = [R[4] + 4 * k for k in range(4)] + [R[5] + 4 * k for k in range(4)] + [R[7] + 4 * k for k in range(4)] + [R[9] + 4 * k for k in range(4)] + [40, 44]
        acc = lambda i, t: accreg[2 * t + i]
        GD = 0
        DB = {}
        for st in range(10):
            s0 = tl.n(); DB[st] = s0 - 16
            if st == 8:
                pass
            for t in range(9):
                buf = WFD[GD % 3]; base = tl.n(); tag = f"D{st}_{t}"
                offs = [k * 9216 + i * 4608 + 32 * t for k in range(4) for i in range(2)]
                for k, rd in enumerate(self.trs(buf, aP2tr, offs)):
                    rd.tag = tag; tl.at(base - 16 + 0.4 + k * 0.9, rd)
                if t == 8 and st < 9:
                    d = P2S[(st + 1) % 4] - P2S[st % 4]
                    tl.at(base - 16 + 7.9, I(f"v_add_u32 v{aP2tr}, {d}, v{aP2tr}" if d > 0 else f"v_subrev_u32 v{aP2tr}, {-d}, v{aP2tr}"))
                pre = [waitlgkm(tag)]
                if t == 0: pre = [waitvm(f"h{st}")] + pre
                tl.at(base - 0.01, pre)
                for i in range(2):
                    for k in range(4):
                        d = vr(acc(i, t)); c = "0" if (st == 0 and k == 0) else d
                        tl.mfma(I(f"{MF} {d}, {vr(buf+4*k)}, {self.hreg(st,k,i)}, {c}"))
                GD += 1
        tl.at(DB[0] - 0.005, [waitlgkm("C1_8_3"), waitvm("wd0"), I("s_barrier")])
        for st in range(1, 10):
            extra = []
            wv = [f"wd{st}"]
            if st == 2: wv += ["hs2", "hs3"]; extra = self.flag_publish(4)
            if st == 7: wv += ["ex"]
            tl.at(DB[st] - 0.005, [waitlgkm(f"D{st-1}_8"), waitvm(*wv), I("s_barrier")] + extra)
        e1 = [[x] for x in self.epi_pair(R[1], R[2], R[2], 0) + self.epi_pair(R[3], R[8], R[2], 1)]
        tl.spread(D0 + 1, D0 + 44, e1)
        tl.spread(D0 + 44, D0 + 54, self.hstore(R[2], 32, "hs3"))
        exl = [I("s_mov_b32 exec_hi, 15")]
        for h in range(2):
            exl += [I(f"s_mul_i32 s{XBS}, s{W}, 1152")] + self.dma(aWD[0], sWO, f"s{T3}", XBS, EXB + 576 * h, "ex", pre=[I(f"s_add_u32 s{T3}, s{REX}, {(18*h+32)*1152}")])
        exl += [I("s_mov_b32 exec_hi, -1")]
        def inter(a, b):
            o = []
            for k in range(max(len(a), len(b))):
                if k < len(a): o.append(a[k])
                if k < len(b): o.append(b[k])
            return o
        tl.spread(DB[0], DB[0] + 70, inter(self.wd_batch(2), self.h_batch(2)))
        tl.spread(DB[1], DB[1] + 70, inter(self.wd_batch(3), self.h_batch(3)) + [exl])
        tl.at(DB[1] + 20.5, hpoll + self.poll_issue("p3"))
        tl.at(DB[2] + 0.5, self.poll_check("p3", 3))
        tl.spread(DB[2] + 1, DB[2] + 70, inter(self.wd_batch(4), self.h_batch(4)))
        tl.spread(DB[3], DB[3] + 70, inter(self.wd_batch(5), self.h_batch(5)))
        tl.at(DB[3] + 30.5, self.poll_issue("p4"))
        tl.at(DB[4] + 0.5, self.poll_check("p4", 4))
        for st in range(4, 8):
            tl.spread(DB[st] + 1, DB[st] + 70, inter(self.wd_batch(st + 2), self.h_batch(st + 2)))
        EH = R[1]; EW = R[2]
        tl.at(DB[5] + 30.5, [I(f"s_lshl_b32 s{T3}, s{Q}, 7"), I(f"s_lshl_b32 s{XBS}, s{M2}, 3"), I(f"s_add_u32 s{T3}, s{T3}, s{XBS}"), I(f"s_lshl_b32 s{XBS}, s{W}, 1"),
                             I(f"s_add_u32 s{T3}, s{T3}, s{XBS}"), I(f"s_lshl_b32 s{T3}, s{T3}, 9"), I(f"s_add_u32 s{T3}, s{T3}, {E_OFF}"), I(f"v_lshlrev_b32 v{aE}, 3, v{L}")] +
              [I(f"buffer_load_dwordx2 {vr(EH+2*i,2)}, v{aE}, {sWS}, s{T3} offen offset:{512*i} sc1", tag="eh") for i in range(2)])
        S7 = DB[7] + 16
        tl.at(S7 + 0.2, [I(f"v_lshrrev_b32 v{vT}, 2, v{L}"), I(f"v_mul_u32_u24 v{vT}, 288, v{vT}"), I(f"v_and_b32 v{vT2}, 3, v{L}"), I(f"v_lshl_add_u32 v{vT}, v{vT2}, 3, v{vT}"), I(f"v_add_u32 v{vT}, {EXB}, v{vT}")])
        for t in range(9):
            tl.at(S7 + 8 * max(t - 1, 0) + 7.95 + 0.001 * t, I(f"ds_read_b64_tr_b16 {vr(EW+2*t,2)}, v{vT} offset:{32*t}", tag=f"ew{t}"))
        for t in range(9):
            pos = S7 + 8 * (t + 1) + 7.5
            tl.at(pos, ([waitvm("eh")] if t == 0 else []) + [waitlgkm(f"ew{t}")] +
                  [I(f"v_mfma_f32_16x16x16_bf16 {vr(acc(i,t))}, {vr(EW+2*t,2)}, {vr(EH+2*i,2)}, {vr(acc(i,t))}") for i in range(2)])
        S9 = DB[9] + 16
        tl.at(S9 - 4.5, [I(f"s_lshl_b32 s{XBS}, s{M2}, 2"), I(f"s_add_u32 s{XBS}, s{XBS}, s{NT}"), I(f"s_lshl_b32 s{XBS}, s{XBS}, 2"), I(f"s_add_u32 s{T3}, s{XBS}, s{W}"),
                         I(f"s_lshl_b32 s{T3}, s{T3}, 2"), I(f"s_add_u32 s{T3}, s{T3}, s{Q}"), I(f"s_mul_i32 s{T3}, s{T3}, 18432"), I(f"s_add_u32 s{T3}, s{T3}, {XB_OFF}"),
                         I(f"v_add_u32 v{aH}, s{T3}, v{aL16}")])
        for t in range(9):
            for i in range(2):
                c = (i * 9 + t) * 1024
                tl.at(S9 + 8 * t + 4 * i + 8.5, [I(f"s_mov_b32 s{T3}, {c}"), I(f"buffer_store_dwordx4 {vr(acc(i,t))}, v{aH}, {sWS}, s{T3} offen sc1", tag="xs")])
        END = tl.n() + 10
        fin = []
        F = lambda s, **k: fin.extend(I(x, **k) for x in s.strip().split("\n"))
        F(f"s_add_u32 s{T3}, s{XBS}, s{Q}\ns_mul_i32 s{T3}, s{T3}, {4*18432}\ns_lshr_b32 s{T0}, s{W}, 1\ns_mul_i32 s{T1}, s{T0}, 9216\ns_add_u32 s{T3}, s{T3}, s{T1}")
        F(f"s_and_b32 s{T1}, s{W}, 1\ns_lshl_b32 s{T2}, s{T1}, 12\ns_add_u32 s{T3}, s{T3}, s{T2}\ns_add_u32 s{T3}, s{T3}, {XB_OFF}\nv_add_u32 v{aP2H}, s{T3}, v{aL16}")
        F(f"s_lshl_b32 s{T3}, s{MT}, 5\ns_lshr_b32 s{T2}, s{J}, 2\ns_add_u32 s{T3}, s{T3}, s{T2}\nv_and_b32 v{vP}, 3, v{L}\nv_lshl_add_u32 v{vP}, v{vP}, 3, s{T3}")
        F(f"s_lshl_b32 s{T3}, s{W}, 12\nv_and_b32 v1, 15, v{L}\nv_mul_u32_u24 v1, 176, v1\nv_lshrrev_b32 v2, 4, v{L}\nv_lshl_add_u32 v1, v2, 3, v1\nv_add_u32 v1, s{T3}, v1")
        F(f"s_lshl_b32 s{T2}, s{M2}, 7\ns_lshl_b32 s84, s{Q}, 5\ns_add_u32 s{T2}, s{T2}, s84\ns_lshl_b32 s84, s{T0}, 4\ns_add_u32 s{T2}, s{T2}, s84\ns_mul_i32 s{T2}, s{T2}, 1152")
        F(f"s_mul_i32 s84, s{NT}, 288\ns_add_u32 s{T2}, s{T2}, s84\ns_lshl_b32 s84, s{T1}, 7\ns_add_u32 s{T2}, s{T2}, s84")
        for j in range(3):
            F(f"v_add_u32 v8, {64*j}, v{L}\nv_mul_u32_u24 v9, 6554, v8\nv_lshrrev_b32 v9, 16, v9\nv_mul_u32_u24 v10, 10, v9\nv_sub_u32 v8, v8, v10\nv_lshlrev_b32 v8, 4, v8")
            F(f"v_mul_u32_u24 v10, 176, v9\nv_add3_u32 v{2+j}, v10, v8, s{T3}\nv_mul_u32_u24 v10, 1152, v9\nv_add3_u32 v{5+j}, v10, v8, s{T2}")
        fin += [waitvm("xs"), I("s_barrier")] + self.flag_publish(5) + self.poll_issue("p5") + self.poll_check("p5", 5)
        GB = R[0]
        for tt in range(5):
            for qq in range(4):
                F(f"s_mov_b32 s{T3}, {qq*18432 + (tt//4)*4096}")
                fin.append(I(f"buffer_load_dwordx4 {vr(GB+16*tt+4*qq)}, v{aP2H}, {sWS}, s{T3} offen offset:{(tt%4)*1024} sc1", tag=f"g{tt}"))
        for tt in range(5):
            b = GB + 16 * tt
            fin.append(waitvm(f"g{tt}"))
            for qq in range(1, 4):
                for r in range(4): F(f"v_add_f32 v{b+r}, v{b+r}, v{b+4*qq+r}")
            F(f"v_cvt_pk_bf16_f32 v{b}, v{b}, v{b+1}\nv_cvt_pk_bf16_f32 v{b+1}, v{b+2}, v{b+3}")
            fin.append(I(f"ds_write_b64 v1, {vr(b,2)} offset:{32*tt}", tag="fw"))
        fin.append(waitlgkm("fw"))
        for j in range(3): fin.append(I(f"ds_read_b128 {vr(24+4*j)}, v{2+j}", tag=f"fr{j}"))
        for j in range(3):
            fin.append(waitlgkm(f"fr{j}"))
            if j == 2: F("s_mov_b32 exec_hi, 0")
            fin.append(I(f"buffer_store_dwordx4 {vr(24+4*j)}, v{5+j}, {sOUT}, 0 offen", tag="o"))
        fin.append(I("s_endpgm"))
        tl.at(END, fin)
        ins = self.pro + tl.linear()
        ins = resolve_waits(ins)
        ins = hoist_m0(ins)
        ins, added = fix_hazards(ins, verbose=opt.get("verbose"))
        errs = check_waits(ins) + check_m0(ins)
        slow, _ = fix_hazards(self.slow)
        sys.stderr.write(f"instrs={len(ins)} mfma={sum(x.kind=='mfma' for x in ins)} nop_states_added={added} wait_errors={errs}\n")
        head = open("gated_mix__linear_attn_block__glu_gated_bilinear__prompt.s.ref").read().split("; Override")[0]
        txt = head + "; @launch grid=(256,1,1) block=(256,1,1) lds=163840\n"
        txt += f'.amdgcn_target "amdgcn-amd-amdhsa--gfx950"\n.text\n.globl {NAME}\n.p2align 8\n.type {NAME},@function\n{NAME}:\n'
        txt += text_of(ins) + text_of(slow) + "L_end:\n  s_endpgm\n"
        txt += f'''.section .rodata,"a"
.p2align 6
.amdhsa_kernel {NAME}
  .amdhsa_next_free_vgpr 512
  .amdhsa_next_free_sgpr 96
  .amdhsa_accum_offset 256
  .amdhsa_float_denorm_mode_32 3
  .amdhsa_group_segment_fixed_size 0
  .amdhsa_kernarg_size 88
  .amdhsa_user_sgpr_count 2
  .amdhsa_user_sgpr_kernarg_segment_ptr 1
  .amdhsa_system_sgpr_workgroup_id_x 1
.end_amdhsa_kernel
'''
        return txt

if __name__ == "__main__":
    opt = {}
    out = sys.argv[1]
    for a in sys.argv[2:]:
        k, v = a.split("="); opt[k] = int(v)
    open(out, "w").write(Gen(opt).build())
```

```python
import re

REG_RE = re.compile(r"\b([vas])\[(\d+):(\d+)\]|\b([vas])(\d+)\b|\b(vcc_lo|vcc|exec|exec_lo|exec_hi|m0|scc)\b")

def regs_of(tok):
    out = []
    for m in REG_RE.finditer(tok):
        if m.group(1):
            out += [(m.group(1), i) for i in range(int(m.group(2)), int(m.group(3)) + 1)]
        elif m.group(4):
            out.append((m.group(4), int(m.group(5))))
        else:
            n = m.group(6)
            if n.startswith("exec"): n = "exec"
            if n.startswith("vcc"): n = "vcc"
            out.append((n, 0))
    return out

TRANS = ("v_exp_f32", "v_rcp_f32", "v_log_f32", "v_rsq_f32", "v_sqrt_f32")

class I:
    def __init__(self, text, tag=None, kind=None, nocount=False):
        self.text = text.strip(); self.tag = tag; self.nocount = nocount
        self.op = self.text.split()[0] if self.text else ""
        self.kind = kind or self._kind()
        self.reads, self.writes = self._rw()
    def _kind(self):
        op = self.op
        if op.endswith(":"): return "label"
        if op.startswith("v_mfma"): return "mfma"
        if op.startswith("buffer_") or op.startswith("global_"): return "vmem"
        if op.startswith("ds_"): return "ds"
        if op.startswith("v_"): return "valu"
        if op.startswith("s_load") or op.startswith("s_mem"): return "smem"
        if op.startswith("s_"): return "salu"
        return "other"
    def _rw(self):
        k = self.kind
        if k in ("label", "other", "waitvm", "waitlgkm"): return set(), set()
        body = self.text[len(self.op):]
        ops = [t.strip() for t in body.split(",")]
        R = lambda t: set(regs_of(t))
        if k == "mfma":
            return R(ops[1]) | R(ops[2]) | R(ops[3]), R(ops[0])
        if k == "vmem":
            allr = set(regs_of(body))
            if "load" in self.op and " lds" not in self.text:
                w = R(ops[0]); r = set()
                for t in ops[1:]: r |= R(t)
                return r | {("exec", 0)}, w
            if " lds" in self.text: allr.add(("m0", 0))
            return allr | {("exec", 0)}, set()
        if k == "ds":
            if "read" in self.op or "permute" in self.op:
                r = set()
                for t in ops[1:]: r |= R(t)
                return r, R(ops[0])
            return set(regs_of(body)), set()
        if k == "valu":
            w = R(ops[0]); r = set()
            rest = ops[1:]
            if self.op.startswith(("v_add_co", "v_addc_co", "v_sub_co", "v_subb_co")):
                w |= R(ops[1]); rest = ops[2:]
            for t in rest: r |= R(t)
            if self.op.startswith("v_fmac"): r |= w
            if self.op.startswith("v_cndmask") and len(ops) == 3: r.add(("vcc", 0))
            if self.op.startswith("v_cmp"): w = R(ops[0])
            return r, w
        if k in ("salu", "smem"):
            if self.op.startswith(("s_cmp", "s_cbranch", "s_branch", "s_waitcnt", "s_barrier", "s_nop", "s_sleep", "s_endpgm", "s_setprio")):
                return set(regs_of(body)), set()
            w = R(ops[0]); r = set()
            for t in ops[1:]: r |= R(t)
            return r, w
        return set(), set()
    def states(self):
        if self.kind in ("label", "other") or getattr(self, "skip", False): return 0
        if self.op == "s_nop": return int(self.text.split()[1]) + 1
        return 1

def waitvm(*tags):
    i = I("s_waitcnt", kind="waitvm"); i.tags = tags; return i
def waitlgkm(*tags):
    i = I("s_waitcnt", kind="waitlgkm"); i.tags = tags; return i

class Atom(list):
    pass

class Timeline:
    def __init__(self):
        self.mf = []; self.items = []; self.seq = 0
    def n(self): return len(self.mf)
    def mfma(self, ins): self.mf.append(ins); return len(self.mf) - 1
    def at(self, pos, instrs, atomic=False):
        if not isinstance(instrs, (list, tuple)): instrs = [instrs]
        if isinstance(instrs, Atom): atomic = True
        instrs = [I(x) if isinstance(x, str) else x for x in instrs]
        if instrs: self.items.append((pos, self.seq, instrs, atomic)); self.seq += 1
    def seq_at(self, pos, bundles):
        for b in bundles: self.at(pos, b)
    def spread(self, p0, p1, bundles):
        n = len(bundles)
        for k, b in enumerate(bundles):
            self.at(p0 + (p1 - p0) * (k + 0.5) / n, b)
    def linear(self):
        items = sorted(self.items, key=lambda t: (t[0], t[1]))
        out = []; j = 0
        for k in range(len(self.mf) + 1):
            while j < len(items) and items[j][0] < k:
                out += items[j][2]; j += 1
            if k < len(self.mf): out.append(self.mf[k])
        while j < len(items):
            out += items[j][2]; j += 1
        return out

def fix_hazards(ins, verbose=False):
    out = []
    lastw = {}
    lastc = {}
    laststore = {}
    t = 0; added = 0
    for x in ins:
        need = 0
        def req(p, d):
            nonlocal need
            need = max(need, d - (t - p - 1))
        if x.kind not in ("label", "other", "waitvm", "waitlgkm"):
            if x.kind == "mfma":
                ops = [s.strip() for s in x.text[len(x.op):].split(",")]
                D = set(regs_of(ops[0])); AB = set(regs_of(ops[1])) | set(regs_of(ops[2])); C = set(regs_of(ops[3]))
                for r in AB | C:
                    if r in lastw:
                        p, k, y = lastw[r]
                        if k == "valu": req(p, 2)
                        if k == "mfma":
                            if r in AB: req(p, 8)
                            elif y.writes != C: req(p, 6)
                            elif y.op != x.op: req(p, 6)
                for r in D:
                    if r in lastw and lastw[r][1] == "mfma" and r not in C: req(lastw[r][0], 6)
            else:
                for r in x.reads:
                    if r in lastw:
                        p, k, y = lastw[r]
                        if k == "mfma" and x.kind in ("valu", "vmem", "ds"): req(p, 8)
                        if k == "valu":
                            if y.op.startswith(TRANS) and x.kind == "valu": req(p, 1)
                            if y.op.startswith(TRANS) and x.kind in ("vmem", "ds"): req(p, 1)
                            if r[0] in ("s", "vcc"):
                                if x.kind == "valu": req(p, 2)
                                if x.kind == "vmem": req(p, 5)
                                if x.kind in ("salu", "smem"): req(p, 1)
                            if r[0] == "v" and x.op.startswith(("v_readfirstlane", "v_readlane")): req(p, 1)
                            if r[0] == "v" and ("dpp" in x.text or x.op.startswith("v_permlane")): req(p, 2)
                        if k == "salu" and r[0] == "m0" and x.kind == "vmem": req(p, 1)
                for r in x.writes:
                    if r in lastw and lastw[r][1] == "mfma" and x.kind in ("valu", "vmem", "ds"): req(lastw[r][0], 8)
                    if r in lastc and x.kind == "valu": req(lastc[r], 3)
                    if r in laststore: req(laststore[r], 2)
        if need > 0:
            added += need
            if verbose: print(f"  nop {need} before: {x.text}")
            while need > 0:
                k = min(need, 16); out.append(I(f"s_nop {k-1}")); t += k; need -= k
        out.append(x)
        if x.kind not in ("label", "other"):
            if x.kind == "mfma":
                ops = [s.strip() for s in x.text[len(x.op):].split(",")]
                for r in regs_of(ops[3]): lastc[r] = t
            if x.kind == "vmem" and "store" in x.op and ("x4" in x.op or "x3" in x.op):
                ops = [s.strip() for s in x.text[len(x.op):].split(",")]
                for r in regs_of(ops[0]): laststore[r] = t
            if x.kind == "ds" and "write" in x.op and ("b128" in x.op or "b96" in x.op):
                pass
            for r in x.writes: lastw[r] = (t, x.kind, x)
            t += x.states()
    return out, added

def resolve_waits(ins):
    vm = []; lg = []; mark = {}
    out = []
    for x in ins:
        if x.kind == "vmem" and not x.nocount: vm.append(x.tag)
        elif x.kind == "vmem" and x.tag is not None: mark[x.tag] = len(vm) - 1
        elif x.kind == "ds" and not x.nocount: lg.append(x.tag)
        if x.kind in ("waitvm", "waitlgkm"):
            q = vm if x.kind == "waitvm" else lg
            idx = -1
            for tg in x.tags:
                found = [i for i, v in enumerate(q) if v == tg]
                if tg in mark and x.kind == "waitvm": found = [mark[tg]]
                assert found, f"wait on tag {tg} never issued"
                idx = max(idx, found[-1])
            n = len(q) - 1 - idx
            lim = 63 if x.kind == "waitvm" else 15
            n = min(n, lim)
            nm = "vmcnt" if x.kind == "waitvm" else "lgkmcnt"
            if out and out[-1].op == "s_waitcnt" and nm not in out[-1].text and getattr(out[-1], "merged", False):
                out[-1].text += f" {nm}({n})"
            else:
                y = I(f"s_waitcnt {nm}({n})"); y.merged = True; out.append(y)
            continue
        out.append(x)
    return out

def text_of(ins):
    return "\n".join(("" if x.kind == "label" else "  ") + x.text for x in ins) + "\n"

def check_waits(ins):
    vm = []; lg = []
    errs = 0
    for x in ins:
        if x.op == "s_waitcnt":
            m = re.search(r"vmcnt\((\d+)\)", x.text)
            if m:
                n = int(m.group(1)); vm = vm[len(vm) - n:] if n < len(vm) else vm
                if n == 0: vm = []
            m = re.search(r"lgkmcnt\((\d+)\)", x.text)
            if m:
                n = int(m.group(1)); lg = lg[len(lg) - n:] if n < len(lg) else lg
                if n == 0: lg = []
            continue
        touched = x.reads | x.writes
        for q in (vm, lg):
            for y in q:
                if y.writes & touched and not (getattr(x, 'junk', False) and getattr(y, 'junk', False)):
                    print(f"WAIT ERROR: '{x.text}' touches regs of in-flight '{y.text}'"); errs += 1
        if x.kind == "vmem" and not x.nocount: vm.append(x)
        if x.kind == "ds" and not x.nocount: lg.append(x)
        if len(vm) > 63: print("NOTE: >63 vmem outstanding at", x.text)
    return errs

def hoist_m0(ins):
    ins = list(ins)
    for k in range(1, len(ins) - 1):
        x = ins[k]
        if ("m0", 0) in x.writes and ("m0", 0) in ins[k + 1].reads:
            p = ins[k - 1]
            if p.kind in ("mfma", "valu", "ds") or (p.kind == "vmem" and ("m0", 0) not in p.reads):
                if not (p.writes & x.reads) and not getattr(p, "skip", False):
                    ins[k - 1], ins[k] = x, p
    return ins

def check_m0(ins):
    cur = None; errs = 0
    for x in ins:
        if ("m0", 0) in x.writes: cur = x.text
        if ("m0", 0) in x.reads and x.kind == "vmem":
            if getattr(x, "m0exp", None) != cur:
                print("M0 ERROR:", x.text, "expects", getattr(x, "m0exp", None), "has", cur); errs += 1
    return errs
```

```python
from asmlib import *

class Unit:
    def __init__(self, ins, pos, seq):
        self.ins = ins; self.pos = pos; self.seq = seq
        self.reads = set(); self.writes = set()
        for x in ins:
            self.reads |= (x.reads - self.writes) | x.reads; self.writes |= x.writes
        self.reads.discard(("exec", 0)); self.writes.discard(("exec", 0))
        ks = [x.kind for x in ins]
        self.vm = any(k == "vmem" for k in ks); self.ds = any(k == "ds" for k in ks)
        self.bar = any(x.op == "s_barrier" for x in ins)
        self.wait = any(k in ("waitvm", "waitlgkm") for k in ks)
        self.mf = any(k == "mfma" for k in ks)
        self.cost = max([getattr(x, "cost", 0) for x in ins])
        self.urgent = any(getattr(x, 'urgent', False) for x in ins)
        self.preds = []; self.dl = None; self.gap = None
        if len(ins) > 1 or self.bar: self.t = "X"
        elif self.vm: self.t = "D"
        elif self.ds: self.t = "W" if "write" in ins[0].op else "T"
        elif self.mf: self.t = "M"
        elif ks[0] == "valu": self.t = "E" if ins[0].op.startswith(TRANS) else "V"
        else: self.t = "S"

def fits(cur, t, prev_vv):
    c = cur + [t]
    nS, nT, nV, nE, nD = (c.count(k) for k in "STVED")
    if any(k in c for k in "XWM"): return len(c) == 1
    if nD: return len(c) == 1
    if nE: return nE == 1 and nT == 0 and nV == 0 and nS <= 1
    if nT: return nT == 1 and nV <= 1 and nS <= 1
    if nV == 2: return nS <= 1 and not prev_vv
    return nV <= 1 and nS + nV <= 3

def schedule(tl, report=None):
    items = sorted(tl.items, key=lambda t: (t[0], t[1]))
    U = []
    for pos, seq, ins, atomic in items:
        if atomic: U.append(Unit(ins, pos, seq))
        else:
            for x in ins: U.append(Unit([x], pos, seq))
    mf = tl.mf; n = len(mf)
    tagw = {}
    for u in U:
        for x in u.ins:
            if x.tag is not None and x.kind in ("vmem", "ds"): tagw.setdefault(x.tag, set()).update(x.writes)
    for u in U:
        for x in u.ins:
            if x.tag is not None and x.kind in ("vmem", "ds"): u.writes = u.writes | {("tag", x.tag)}
            if x.kind in ("waitvm", "waitlgkm"):
                for tg in x.tags: u.reads = u.reads | {("tag", tg)}; u.writes = u.writes | tagw.get(tg, set())
    import math
    for u in U: u.e = min(n - 1, math.floor(u.pos)) if u.pos >= 0 else -1
    lastw = {}; readers = {}; last_vm = last_ds = last_bar = None; since_bar = []; last_wait = {"v": None, "l": None}
    for u in U:
        P = set()
        for r in u.reads:
            if r in lastw: P.add(lastw[r])
        for r in u.writes:
            if r in lastw: P.add(lastw[r])
            for q in readers.get(r, []): P.add(q)
        if u.ds and last_ds: P.add(last_ds)
        mem = u.vm or u.ds or u.wait or u.bar
        if mem and last_bar: P.add(last_bar)
        if u.bar:
            for q in since_bar: P.add(q)
        if u.vm or u.ds:
            for w in last_wait.values():
                if w is not None and getattr(w, "fence", False): P.add(w)
        P.discard(u); u.preds = list(P)
        for r in u.reads: readers.setdefault(r, []).append(u)
        for r in u.writes: lastw[r] = u; readers[r] = []
        if u.vm: last_vm = u
        if u.ds: last_ds = u
        if u.wait:
            u.fence = any(getattr(x, "fence", False) for x in u.ins)
            if u.fence:
                if last_wait["v"] is not None: u.preds.append(last_wait["v"])
                last_wait["v"] = u
        if u.bar: last_bar = u; since_bar = []
        elif u.wait: since_bar.append(u)
    byreg_r = {}; byreg_w = {}
    for k, m in enumerate(mf):
        for r in m.reads: byreg_r.setdefault(r, []).append(k)
        for r in m.writes: byreg_w.setdefault(r, []).append(k)
    import bisect
    def first_after(lst, e):
        i = bisect.bisect_right(lst, e); return lst[i] if i < len(lst) else None
    for u in U:
        d = n
        for r in u.writes:
            for tab in (byreg_r, byreg_w):
                if r in tab:
                    f = first_after(tab[r], u.e)
                    if f is not None: d = min(d, f)
        for r in u.reads:
            if r in byreg_w:
                f = first_after(byreg_w[r], u.e)
                if f is not None: d = min(d, f)
        if u.t in ("V", "E") and d < n and any(r in byreg_r and first_after(byreg_r[r], u.e) == d for r in u.writes): d = max(u.e + 1, d - 1)
        hard = min([getattr(x, "dl", n) for x in u.ins])
        u.dl = min(d, max(hard, u.e + 1)) - 1
    for u in reversed(U):
        for p in u.preds: p.dl = min(p.dl, u.dl)
    out = []; pend = []; j = 0; vm_free = -1e9; prev_vv = False; over = 0; stat = {}
    rank = {"S": 0, "T": 1, "D": 1, "W": 1, "X": 1, "M": 1, "V": 2, "E": 2}
    Ts = [u for u in U if u.t == "T"]; tj = 0
    for k in range(-1, n):
        if k >= 0: out.append(mf[k])
        while j < len(U) and U[j].e <= k: pend.append(U[j]); j += 1
        cur = []; placed = []
        last = k == n - 1 or k == -1
        ready = lambda u: all(p.gap is not None for p in u.preds)
        order_ok = lambda u: all(rank[p.t] <= rank[u.t] for p in u.preds if p.gap == k)
        state = {"forced": False}
        def put(u):
            nonlocal vm_free
            if not (fits(cur, u.t, prev_vv) and order_ok(u)): state["forced"] = True
            u.gap = k; cur.append(u.t); placed.append(u); pend.remove(u)
            if u.vm: vm_free = max(vm_free, k) + u.cost
        def drain(cond):
            progress = True
            while progress:
                progress = False
                for u in sorted(pend, key=lambda u: (u.dl, u.pos, u.seq)):
                    if ready(u) and cond(u): put(u); progress = True; break
        while tj < len(Ts) and Ts[tj].gap is not None: tj += 1
        def t_slack():
            dls = sorted(u.dl for u in Ts[tj:tj + 40] if u.gap is None and u.e <= k + 24)
            return all(d - k >= a + 1 for a, d in enumerate(dls))
        must_now = [u for u in pend if u.dl <= k]
        solo = [u for u in sorted(pend, key=lambda u: (not u.urgent, u.pos, u.seq)) if u.t in "DXWM" and ready(u) and not (u.vm and not u.urgent and vm_free > k + 0.5)]
        if last or any(u.t != "S" for u in must_now):
            drain(lambda u: u.dl <= k or last)
            if not state["forced"]: drain(lambda u: u.t in "STVE" and fits(cur, u.t, prev_vv) and order_ok(u))
        elif solo and (not must_now or solo[0].urgent):
            drain(lambda u: u.dl <= k)
            if not t_slack():
                c = [u for u in sorted(pend, key=lambda u: (u.dl, u.pos, u.seq)) if u.t == "T" and ready(u)]
                if c: put(c[0])
            put(solo[0])
        else:
            drain(lambda u: u.dl <= k)
            drain(lambda u: u.t in "STVE" and fits(cur, u.t, prev_vv) and order_ok(u))
        if not state["forced"]: placed.sort(key=lambda u: rank[u.t])
        elif k >= 0 and k < n - 1:
            over += 1; stat.setdefault(k // 72, []).append("".join(cur))
        prev_vv = cur.count("V") == 2
        for u in placed: out += u.ins
    if report is not None:
        report["over"] = over; report["stat"] = stat
        iss = {}; wt = {}
        for u in U:
            for x in u.ins:
                if x.tag is not None and x.kind == "vmem": iss[x.tag] = u.gap
                if x.kind == "waitvm":
                    for tg in x.tags: wt.setdefault(tg, u.gap)
        report["slack"] = {t: (iss[t], wt[t], wt[t] - iss[t]) for t in iss if t in wt}
    return out
```

```python
import sys
from asmlib import *
from sched import schedule

NAME = "gated_mix__linear_attn_block__glu_gated_bilinear__prompt_kernel"
H_OFF, E_OFF, KV_OFF, FL_OFF, XB_OFF, WS_SZ = 0, 0x1400000, 0x1480000, 0x1580000, 0x1600000, 0x2900000
ST_OFF = 0x2800000
XS = [0, 32768, 65536]; WS_ = [98304, 114688, 131072]; MISC = 147456
GUB = [MISC + 4096, 98304, 86016]
HCS = [122880, 98304, 73728]
P2S = [0, 36864, 73728, 110592]
EXB = MISC
OWN = 73728
FIN = 110592
sX, sQKV, sWO, sWG, sWU, sWD, sGW, sOUT, sDBG, sWS, sGU = [f"s[{a}:{a+3}]" for a in range(4, 48, 4)]
sXB = sGW
W, MT, N, Q, M2, NT, J, FLAG = 48, 49, 50, 51, 52, 53, 54, 55
T0, T1, T2, T3 = 56, 57, 58, 59
MX, MHC, MQKV, MW1K, MP2 = 60, 61, 62, 63, 64
SOFX = 64
RA, RB, RM, RO = 72, 73, 74, 75
SPIN, NL1K = 76, 77
MASK2 = "s[78:79]"; MASKQ0 = "s[80:81]"
REX, U0, U1, FBYTE = 82, 83, 84, 85
TH, TK = 90, 91
L = 0
aXd = [1, 2]; aWd = 3; aWtr = [4, 5, 6, 7]; aXr = [8, 9]; aGr = 10; aH = 11
aQKVd, aGUd, aQKVtr, aCtr, aGUtr = 12, 13, 14, 15, 16
aHCd = 17; aHCtr = [18, 19]; vF, vP, vT, vT2 = 20, 21, 22, 23
aWD = list(range(1, 10)); aP2tr = 10; aP2H = 12; aKV = 13; aMisc = 14; aL16 = 15; aE = 16
WF = [24, 32, 40]; GATE = 48; vFV = 51; vF2 = 55; vP2 = 59
R = [64 + 16 * i for i in range(10)]
def vr(a, n=4): return f"v[{a}:{a+n-1}]"
def xreg(p, t, i):
    f = 4 * t + i
    return f"a[{32*p+4*f}:{32*p+4*f+3}]" if p < 8 else vr(224 + 4 * f)
MF = "v_mfma_f32_16x16x32_bf16"
LOG2E, EPS = "0x3fb8aa3b", "0x358637bd"
def Is(s): return [I(x) for x in s.strip().split("\n")]
def costed(i, c, urgent=False): i.cost = c; i.urgent = urgent; return i
def fence(w): w.fence = True; return w

class Gen:
    def __init__(self, opt):
        self.opt = opt; self.tl = Timeline(); self.slow = []; self.nl = 0; self.pro = []; self.stamps = []
        self.cST = opt.get("cst", 8)
        self.c = dict(x=4.8, q=12.8, g=18.3, hc=9.8, wd=opt.get("cwd", 4.6), h=opt.get("ch", 3.4))
        sc = opt.get("csc", 0.85)
        for k in ("q", "g", "hc"): self.c[k] *= sc
    def lab(self, s): self.nl += 1; return f"L_{s}_{self.nl}"
    def dma(self, vaddr, srd, soff, m0base, m0imm, tag, cost, imm=0, pre=[], setm0=True):
        m0t = f"s_add_u32 m0, s{m0base}, {m0imm}"
        o = [I(m0t)] if setm0 else []
        o += pre
        offs = f" offset:{imm}" if imm else ""
        o.append(costed(I(f"buffer_load_dwordx4 v{vaddr}, {srd}, {soff} offen{offs} lds", tag=tag), cost))
        o[-1].m0exp = m0t
        return o
    def w0only(self, body):
        lb = self.lab("w0")
        for x in body: x.skip = True
        return Atom([I(f"s_cmp_lg_u32 s{W}, 0"), I(f"s_cbranch_scc1 {lb}")] + body + [I(f"{lb}:")])
    def flag_publish(self, val):
        return self.w0only([I(f"v_mov_b32 v{vFV}, {val}"), I("s_mov_b64 exec, 1"),
                            costed(I(f"buffer_store_dword v{vFV}, off, {sWS}, s{FLAG} sc1", nocount=True), 0, True), I("s_mov_b64 exec, -1")])
    def poll_ld(self, dst, addr, srd, tag=None):
        return costed(I(f"buffer_load_dword v{dst}, v{addr}, {srd}, 0 offen sc1", nocount=True, tag=tag), 0, True)
    def poll_issue(self, *specs):
        return self.w0only([self.poll_ld(d, a, s, t) for t, d, a, s in specs])
    def poll_check(self, *specs):
        body = []
        for tag, d, a, s, cmp, need in specs:
            ok = self.lab("ok"); sl = self.lab("slow"); lp = self.lab("lp")
            test = [I(f"v_cmp_{cmp}_u32 vcc, {need}, v{d}"), I("s_cmp_eq_u64 vcc, -1")]
            self.slow += [I(f"{sl}:"), I(f"s_mov_b32 s{SPIN}, 0x40000"), I(f"{lp}:"), I("s_sleep 1"), self.poll_ld(d, a, s), I("s_waitcnt vmcnt(0)"),
                          I(test[0].text), I(test[1].text), I(f"s_cbranch_scc1 {ok}"),
                          I(f"s_sub_u32 s{SPIN}, s{SPIN}, 1"), I(f"s_cmp_lg_u32 s{SPIN}, 0"), I(f"s_cbranch_scc1 {lp}"), I(f"s_branch {ok}")]
            body += [waitvm(tag)] + test + [I(f"s_cbranch_scc0 {sl}"), I(f"{ok}:")]
        return self.w0only(body)
    def stamp(self, name, early=False):
        if not self.opt.get("stamps"): return []
        k = len(self.stamps); self.stamps.append(name)
        cur = 92 + 2 * (k % 2); prv = 92 + 2 * ((k + 1) % 2); tv = 192 if early else vFV
        o = [I(f"s_memtime s[{cur}:{cur+1}]")]
        if k: o += [I(f"v_mov_b32 v{tv}, s{prv}"), costed(I(f"buffer_store_dword v{tv}, off, {sWS}, s96 offset:{4*(k-1)}", nocount=True), 0, True)]
        return Atom(o)
    def phi_block(self, regs, tmps):
        o = []
        for k in range(0, len(regs), len(tmps)):
            rs = list(zip(regs[k:k + len(tmps)], tmps))
            o += [I(f"v_mul_f32 v{t}, {LOG2E}, v{r}") for r, t in rs]
            o += [I(f"v_exp_f32_e64 v{t}, v{t} clamp") for r, t in rs]
            o += [I(f"v_max_f32 v{r}, {EPS}, v{r}") for r, t in rs]
            o += [I(f"v_add_f32 v{r}, v{t}, v{r}") for r, t in rs]
        return o
    def epi_pair(self, g, u, dst, half):
        o = []
        for i in range(4):
            for r in range(4): o.append(I(f"v_mul_f32 v{g+4*i+r}, v{g+4*i+r}, v{u+4*i+r}"))
            for r in range(4): o.append(I(f"v_mul_f32 v{g+4*i+r}, v{g+4*i+r}, v{GATE+4*i+2}"))
            for h in range(2): o.append(I(f"v_cvt_pk_bf16_f32 v{dst+4*i+2*half+h}, v{g+4*i+2*h}, v{g+4*i+2*h+1}"))
        return o
    def hstore(self, data, kk, tag, chunk0=False):
        o = []
        for i in range(4):
            c = H_OFF + i * 40960 + kk * 1024
            o.append([I(f"s_add_u32 s{T3}, s{NL1K}, {c}") if chunk0 else I(f"s_mov_b32 s{T3}, {c}"),
                      costed(I(f"buffer_store_dwordx4 {vr(data+4*i)}, v{aH}, {sWS}, s{T3} offen sc1", tag=tag), self.cST)])
        return o
    def x_batch(self, p):
        o = []
        for b in range(8):
            o.append(self.dma(aXd[b & 1], sX, f"s{SOFX+b}" if b else "0", MX, XS[p % 3] + b * 1024, f"x{p}", self.c["x"]))
        o.append([I(f"v_add_u32 v{aXd[0]}, 128, v{aXd[0]}"), I(f"v_add_u32 v{aXd[1]}, 128, v{aXd[1]}")])
        return o
    def wA_batch(self, p):
        o = []
        for h in range(2):
            for m, srd in ((0, sWG), (1, sWU)):
                b = [I(f"s_mov_b32 s{T0+h}, {(64*p+32*h)*9216}")] if m == 0 else []
                o.append(self.dma(aWd, srd, f"s{T0+h}", MW1K, WS_[p % 3] + m * 8192 + h * 4096, f"w{p}", self.c["x"], pre=b))
        return o
    def x_reads(self, p):
        o = []
        for t in range(2):
            for i in range(4):
                o.append([I(f"ds_read_b128 {xreg(p,t,i)}, v{aXr[t]} offset:{i*2048}", tag=f"xr{p}")])
        d = XS[(p + 1) % 3] - XS[p % 3]
        op = f"v_add_u32 v%d, {d}, v%d" if d > 0 else f"v_subrev_u32 v%d, {-d}, v%d"
        o.append([I(op % (aXr[0], aXr[0])), I(op % (aXr[1], aXr[1]))])
        return o
    def qkv_batch(self, ss):
        o = []
        for jj in range(7):
            j = 7 * ss + jj
            o.append(self.dma(aQKVd, sQKV, f"s{T2}", MQKV, 4032 * j, f"qs{ss}", self.c["q"], pre=[I(f"s_mov_b32 s{T2}, {96768*j}")]))
            if jj in (1, 3, 5):
                kp = 3 * ss + jj // 2
                o.append(self.dma(aGUd, sGU, f"s{T2}", MW1K, GUB[ss] + (kp % 3) * 4096, f"qs{ss}", self.c["g"], pre=[I(f"s_mov_b32 s{T2}, {kp*64*9216}")]))
        return o
    def hc_batch(self, hs):
        o = []
        for k6 in range(6):
            ks = 6 * (hs % 3) + k6
            o.append(self.dma(aHCd, sGU, f"s{T2}", MHC, HCS[hs % 3] + k6 * 4096, f"hc{hs}", self.c["hc"], pre=[I(f"s_mov_b32 s{T2}, {ks*32*9216 + (hs//3)*64}")]))
        return o
    def wd_batch(self, st):
        o = []
        if st < 4: pre = [I(f"s_add_u32 s{T0}, s{RA}, {(576*(st>>1)+256*(st&1))*1152}")]
        elif st < 6: pre = [I(f"s_add_u32 s{T0}, s{RB}, {(576*(st-4)+64)*1152}")]
        elif st < 8: pre = [I(f"s_add_u32 s{T0}, s{RM}, {(576*(st-6)+512)*1152}"), I(f"s_add_u32 s{T1}, s{RO}, {4*(st-6)*18*1152}")]
        else: pre = [I(f"s_add_u32 s{T0}, s{RB}, {(576*(st-8)+96)*1152}")]
        for j in range(9):
            m0 = P2S[st % 4] + (j // 4) * 4096; sm = j % 4 == 0
            imm = (j % 4) * 1024; tag = f"wd{st}"; c = self.c["wd"]
            if 6 <= st < 8 and j == 4:
                a = self.dma(aWD[j], sWD, f"s{T0}", MP2, m0, tag, c, imm, pre=[I("s_mov_b32 exec_hi, 0")])
                o.append(a[:1])
                b = Atom(a[1:] + self.dma(aWD[j], sWO, f"s{T1}", MP2, m0, tag, c, imm, pre=Is("s_mov_b32 exec_hi, -1\ns_mov_b32 exec_lo, 0"), setm0=False) + [I("s_mov_b32 exec_lo, -1")])
            elif 6 <= st < 8 and j > 4: b = self.dma(aWD[j], sWO, f"s{T1}", MP2, m0, tag, c, imm, setm0=sm)
            else: b = self.dma(aWD[j], sWD, f"s{T0}", MP2, m0, tag, c, imm, pre=pre, setm0=sm)
            o.append(b); pre = []
        return o
    def hreg(self, st, k, i): b = 32 * (st % 8) + 16 * i + 4 * k; return f"a[{b}:{b+3}]"
    def h_batch(self, st):
        o = []
        for i in range(2):
            for k in range(4):
                pre = [I(f"s_mov_b32 s{TH}, {H_OFF + st*4096 + i*40960}")] if k == 0 else []
                o.append(pre + [costed(I(f"buffer_load_dwordx4 {self.hreg(st,k,i)}, v{aP2H}, {sWS}, s{TH} offen offset:{k*1024} sc1", tag=f"h{st}"), self.c["h"])])
        return o

    def prologue(self):
        P = self.pro
        A = lambda s: P.extend(Is(s))
        A(f"s_cmp_ge_u32 s2, 256\ns_cbranch_scc1 L_end")
        P.extend(self.stamp("entry", True))
        A("s_load_dwordx16 s[64:79], s[0:1], 0\ns_load_dwordx4 s[80:83], s[0:1], 64\ns_load_dwordx2 s[84:85], s[0:1], 80")
        A(f"v_lshrrev_b32 v1, 6, v0\nv_and_b32 v{L}, 63, v0\nv_readfirstlane_b32 s{W}, v1")
        A(f"s_lshr_b32 s{J}, s2, 3\ns_and_b32 s{T0}, s2, 1\ns_bfe_u32 s{Q}, s2, 0x20001")
        A(f"s_lshl_b32 s{MT}, s{T0}, 2\ns_and_b32 s{NT}, s{J}, 3\ns_add_u32 s{MT}, s{MT}, s{NT}")
        A(f"s_lshr_b32 s{T1}, s{J}, 2\ns_lshl_b32 s{N}, s{Q}, 3\ns_add_u32 s{N}, s{N}, s{T1}")
        A(f"s_lshl_b32 s{M2}, s{T0}, 3\ns_add_u32 s{M2}, s{M2}, s{T1}")
        A(f"s_lshl_b32 s{MX}, s{W}, 13\ns_lshl_b32 s{MW1K}, s{W}, 10\ns_mul_i32 s{MQKV}, s{W}, 1008")
        A(f"s_and_b32 s{T0}, s{W}, 1\ns_lshl_b32 s{T0}, s{T0}, 11\ns_lshr_b32 s{T2}, s{W}, 1\ns_lshl_b32 s{T2}, s{T2}, 10\ns_add_u32 s{MHC}, s{T0}, s{T2}")
        A(f"s_lshr_b32 s{T0}, s{N}, 2\ns_mul_i32 s{T0}, s{T0}, 1152\ns_and_b32 s{T2}, s{N}, 3\ns_lshl_b32 s86, s{T2}, 8\ns_add_u32 s86, s86, s{T0}")
        A(f"s_lshl_b32 s87, s{T2}, 5\ns_add_u32 s87, s87, s{T0}\ns_add_u32 s87, s87, 1024")
        A(f"v_lshrrev_b32 v20, 3, v{L}\nv_lshrrev_b32 v21, 4, v{L}\nv_bfe_u32 v22, v{L}, 2, 2\nv_and_b32 v23, 3, v{L}")
        A(f"s_lshl_b32 s{T0}, s{MT}, 8\ns_lshl_b32 s{T2}, s{W}, 6\ns_add_u32 s{T0}, s{T0}, s{T2}")
        A(f"v_add_u32 v24, s{T0}, v20\nv_mul_u32_u24 v24, 1152, v24\nv_and_b32 v25, 7, v{L}\nv_xor_b32 v26, v25, v21\nv_lshl_add_u32 v{aXd[0]}, v26, 4, v24\nv_xor_b32 v{aXd[1]}, 64, v{aXd[0]}")
        A(f"s_lshl_b32 s{T0}, s{W}, 3\nv_add_u32 v24, s{T0}, v20\nv_mul_u32_u24 v24, 9216, v24\nv_add_u32 v24, s86, v24")
        A(f"s_and_b32 s{T0}, s{W}, 1\ns_lshl_b32 s{T0}, s{T0}, 1\nv_and_b32 v26, 1, v21\nv_or_b32 v26, s{T0}, v26\nv_lshrrev_b32 v27, 1, v25\nv_xor_b32 v26, v26, v27")
        A(f"v_lshl_add_u32 v24, v26, 5, v24\nv_and_b32 v28, 1, v{L}\nv_lshl_add_u32 v{aWd}, v28, 4, v24\nv_lshlrev_b32 v24, 4, v{L}")
        P.append(I("s_waitcnt lgkmcnt(0)"))
        def srd(dst, lo, size):
            d = int(dst[2:dst.index(":")])
            return f"s_mov_b32 s{d}, s{lo}\ns_and_b32 s{d+1}, s{lo+1}, 0xffff\ns_mov_b32 s{d+2}, {size}\ns_mov_b32 s{d+3}, 0x20000"
        A(srd(sWG, 72, 5308416)); A(srd(sWU, 74, 5308416)); A(srd(sX, 64, 2359296))
        P.extend(sum(self.wA_batch(0), []))
        A(srd(sGW, 78, 1152)); A(srd(sQKV, 66, 1990656)); A(srd(sWD, 76, 5308416)); A(srd(sOUT, 80, 2359296)); A(srd(sDBG, 82, 256)); A(srd(sWS, 84, WS_SZ))
        A(f"s_sub_u32 s12, s68, 18432\ns_subb_u32 s13, s69, 0\ns_and_b32 s13, s13, 0xffff\ns_mov_b32 s14, {663552+18432}\ns_mov_b32 s15, 0x20000")
        for b in range(1, 8): A(f"s_mov_b32 s{SOFX+b}, {9216*b}")
        A(f"s_lshl_b32 s{FBYTE}, s{MT}, 5\ns_add_u32 s{FBYTE}, s{FBYTE}, s{N}\ns_lshl_b32 s{FLAG}, s{FBYTE}, 7\ns_add_u32 s{FLAG}, s{FLAG}, {FL_OFF}")
        P.extend(self.flag_publish(0))
        if self.opt.get("stamps"): A(f"s_lshl_b32 s96, s2, 2\ns_add_u32 s96, s96, s{W}\ns_lshl_b32 s96, s96, 8\ns_add_u32 s96, s96, {ST_OFF}")
        P.extend(self.stamp("kernarg", True))
        C = []
        B = lambda s: C.extend(Is(s))
        UA, UB = 88, 89
        B(f"s_bitcmp1_b32 s{W}, 0\ns_cselect_b32 s44, s20, s16\ns_cselect_b32 s45, s21, s17\ns_mov_b32 s46, 5308416\ns_mov_b32 s47, 0x20000")
        B(f"v_lshl_add_u32 v29, v21, 3, v22\nv_lshlrev_b32 v30, 7, v29\nv_lshl_add_u32 v30, v23, 3, v30\nv_add_u32 v30, {WS_[0]}, v30")
        B(f"v_lshrrev_b32 v31, 1, v22\nv_and_b32 v32, 1, v21\nv_lshl_or_b32 v31, v32, 1, v31")
        for k in range(4): B(f"v_xor_b32 v33, {k}, v31\nv_lshl_add_u32 v{aWtr[k]}, v33, 5, v30")
        B(f"v_and_b32 v33, 15, v{L}\nv_lshrrev_b32 v34, 1, v33\nv_xor_b32 v34, v34, v21\nv_lshlrev_b32 v35, 7, v33\nv_add_u32 v35, s{MX}, v35")
        B(f"v_lshl_add_u32 v{aXr[0]}, v34, 4, v35\nv_xor_b32 v{aXr[1]}, 64, v{aXr[0]}")
        B(f"v_lshlrev_b32 v{aGr}, 4, v21\nv_add_u32 v{aGr}, {MISC}, v{aGr}")
        B(f"s_lshl_b32 s{UA}, s{Q}, 7\ns_lshl_b32 s{UB}, s{MT}, 4\ns_add_u32 s{UA}, s{UA}, s{UB}\ns_lshl_b32 s{UB}, s{W}, 2\ns_add_u32 s{UA}, s{UA}, s{UB}")
        B(f"s_mul_i32 s{UA}, s{UA}, 40960\ns_and_b32 s{NL1K}, s{N}, 7\ns_lshl_b32 s{NL1K}, s{NL1K}, 10\ns_add_u32 s{UA}, s{UA}, s{NL1K}\nv_lshl_add_u32 v{aH}, v{L}, 4, s{UA}")
        B(f"v_mul_u32_u24 v34, 7282, v{L}\nv_lshrrev_b32 v34, 16, v34\nv_mul_u32_u24 v35, 9, v34\nv_sub_u32 v35, v{L}, v35")
        B(f"v_mul_u32_u24 v36, 21846, v35\nv_lshrrev_b32 v36, 16, v36\nv_mul_u32_u24 v37, 3, v36\nv_sub_u32 v37, v35, v37")
        B(f"v_mul_u32_u24 v34, 3456, v34\nv_mul_u32_u24 v36, 1152, v36\nv_lshlrev_b32 v37, 4, v37\nv_add3_u32 v34, v34, v36, v37")
        B(f"s_mul_i32 s{UA}, s{W}, 24192\ns_mul_i32 s{UB}, s{N}, 36\ns_add_u32 s{UA}, s{UA}, s{UB}\nv_add_u32 v{aQKVd}, s{UA}, v34")
        B(f"v_lshrrev_b32 v34, 5, v{L}\nv_bfe_u32 v35, v{L}, 3, 2\nv_bfe_u32 v36, v{L}, 1, 2\nv_lshl_add_u32 v36, v34, 2, v36\nv_lshl_add_u32 v36, v35, 3, v36")
        B(f"s_lshr_b32 s{UA}, s{W}, 1\ns_lshl_b32 s{UA}, s{UA}, 5\nv_add_u32 v36, s{UA}, v36\nv_mul_u32_u24 v36, 9216, v36\nv_add_u32 v36, s87, v36\nv_and_b32 v37, 1, v{L}\nv_lshl_add_u32 v{aGUd}, v37, 4, v36")
        B(f"v_mul_u32_u24 v34, 144, v29\nv_lshl_add_u32 v{aQKVtr}, v23, 3, v34")
        B(f"v_mul_u32_u24 v35, 48, v23\nv_add_u32 v35, 80, v35\nv_cmp_gt_u32 vcc, 2, v23\nv_mov_b32 v36, 32\nv_lshlrev_b32 v{aGUtr}, 3, v{L}\nv_cndmask_b32 v35, v36, v35, vcc\nv_add_u32 v{aCtr}, v34, v35")
        B(f"v_add_u32 v{aGUtr}, {GUB[0]}, v{aGUtr}")
        B(f"s_lshr_b32 s{UA}, s{W}, 1\ns_lshl_b32 s{UA}, s{UA}, 2\nv_add_u32 v34, s{UA}, v29\nv_mul_u32_u24 v34, 9216, v34\ns_add_u32 s{UA}, s86, 128\nv_add_u32 v34, s{UA}, v34")
        B(f"v_lshrrev_b32 v35, 1, v23\nv_xor_b32 v35, v35, v32\nv_lshl_add_u32 v34, v35, 5, v34\nv_lshl_add_u32 v{aHCd}, v37, 4, v34")
        B(f"v_lshrrev_b32 v34, 2, v{L}\nv_lshlrev_b32 v34, 6, v34\nv_lshl_add_u32 v34, v23, 3, v34\nv_add_u32 v34, {HCS[0]}, v34")
        B(f"v_lshl_add_u32 v{aHCtr[0]}, v32, 5, v34\nv_xor_b32 v{aHCtr[1]}, 32, v{aHCtr[0]}")
        B(f"v_cmp_eq_u32 {MASK2}, 2, v23\ns_mov_b32 s80, 0xffff\ns_mov_b32 s81, 0\ns_mul_i32 s{MP2}, s{W}, 9216")
        B(f"s_mul_i32 s{UA}, s{Q}, {1152*1152}\ns_lshr_b32 s{UB}, s{W}, 1\ns_mul_i32 s{UB}, s{UB}, {128*1152}\ns_add_u32 s{RA}, s{UA}, s{UB}\ns_and_b32 s{UB}, s{W}, 1\ns_mul_i32 s{UB}, s{UB}, {32*1152}\ns_add_u32 s{RA}, s{RA}, s{UB}")
        B(f"s_mul_i32 s{UB}, s{W}, {128*1152}\ns_add_u32 s{RB}, s{UA}, s{UB}\ns_mul_i32 s{UB}, s{W}, {16*1152}\ns_add_u32 s{RM}, s{UA}, s{UB}")
        B(f"s_lshl_b32 s{UA}, s{Q}, 3\ns_add_u32 s{UB}, s{UA}, s{W}\ns_mul_i32 s{RO}, s{UB}, {18*1152}\ns_add_u32 s{UB}, s{UB}, s{W}\ns_mul_i32 s{REX}, s{UB}, {18*1152}")
        loads = self.x_batch(0) + [self.dma(24, sGW, f"s{MW1K}", MW1K, MISC, "gw", 4.8)] + self.x_batch(1) + self.wA_batch(1)
        npro = self.opt.get("npro", 0)
        self.first = [self.x_batch(2), self.wA_batch(2), self.x_batch(3)]
        for b in self.first[:npro]: loads += b
        self.first = self.first[npro:]
        k = 0
        for b in loads:
            P.extend(b); P.extend(C[k:k + 5]); k += 5
        P.extend(C[k:])
        if self.opt.get("codepf", 1):
            A(f"s_getpc_b64 s[88:89]\nL_pc:\nv_lshlrev_b32 v25, 7, v{L}\nv_add_u32 v25, s{MX}, v25")
            A(f"v_add_u32 v26, 32768, v25\nv_min_u32 v25, L_end-L_pc, v25\nv_min_u32 v26, L_end-L_pc, v26")
            P.append(I("global_load_dword v224, v25, s[88:89]", tag="pf")); P.append(I("global_load_dword v225, v26, s[88:89]", tag="pf"))
        P.extend(self.stamp("issued", True))
        P.append(waitvm("x0"))
        P.extend(sum(self.x_reads(0), []))
        P.append(waitvm("w0", "gw")); P.append(I("s_barrier"))

    def group(self, acc, buf, p, first, x_is_a, reads, tag):
        tl = self.tl; base = tl.n()
        for rd in reads:
            rd.tag = tag; rd.dl = base - 8; tl.at(base - 16, rd)
        tl.at(base - 1, waitlgkm(tag))
        for i in range(4):
            for t in range(2):
                w = vr(buf + 4 * t); x = xreg(p, t, i); d = vr(acc + 4 * i)
                c = "0" if (first and t == 0) else d
                tl.mfma(I(f"{MF} {d}, {x}, {w}, {c}" if x_is_a else f"{MF} {d}, {w}, {x}, {c}"))
        return base
    def trs(self, buf, addr, offs):
        return [I(f"ds_read_b64_tr_b16 {vr(buf+2*k,2)}, v{addr} offset:{o}") for k, o in enumerate(offs)]
    def barrier(self, pos, lg=(), vm=(), pre=None, post=None):
        tl = self.tl
        if pre: tl.at(pos - 0.6, pre)
        b = ([waitlgkm(*lg)] if lg else []) + [waitvm(*vm), I("s_barrier")]
        b[-1].dl = int(pos)
        tl.at(pos - 0.5, Atom(b))
        if post: tl.at(pos - 0.4, post)

    def build(self):
        tl = self.tl; opt = self.opt
        self.prologue()
        G = 0
        A0 = tl.n()
        for b in self.first: tl.seq_at(A0, b)
        for p in range(9):
            s0 = tl.n()
            tl.at(s0 + 0.1, self.stamp(f"A{p}", True))
            for g in range(9):
                buf = WF[G % 3]
                if g == 0:
                    rd = [I(f"ds_read_b128 {vr(buf+4*t)}, v{aGr} offset:{p*128+t*64}") for t in range(2)]
                    self.group(GATE, buf, p, p == 0, False, rd, f"A{p}_{g}")
                else:
                    tile, mat = (g - 1) // 2, (g - 1) % 2
                    offs = [(p % 3) * 16384 + mat * 8192 + ks * 4096 + i * 512 for ks in range(2) for i in range(2)]
                    self.group(R[g - 1], buf, p, p == 0, False, self.trs(buf, aWtr[tile], offs), f"A{p}_{g}")
                G += 1
            if p < 8:
                xp = s0 + opt.get("xrd", 20)
                tl.at(xp - 0.1, fence(waitvm(f"x{p+1}")))
                tl.spread(xp, s0 + 47.9, self.x_reads(p + 1))
                post = None
                if p == 0:
                    post = self.w0only(Is(f"v_mov_b32 v192, 1\ns_mov_b64 exec, 1") + [costed(I(f"buffer_store_byte v192, off, {sDBG}, s{FBYTE} sc1", nocount=True), 0, True), I("s_mov_b64 exec, -1")])
                self.barrier(s0 + 64, lg=[f"xr{p+1}", f"A{p}_8"], vm=[f"w{p+1}"], post=post)
                nxt = []
                if p + 3 <= 8: nxt += self.wA_batch(p + 3)
                if p + 4 <= 8: nxt += self.x_batch(p + 4)
                if p == 5: nxt += self.qkv_batch(0)
                if p == 6: nxt += self.qkv_batch(1)
                tl.seq_at(s0 + 64, nxt)
        s8 = A0 + 8 * 72
        sg = []
        for i in range(4): sg.append(I(f"v_mul_f32 v{GATE+4*i}, 0xbfb8aa3b, v{GATE+4*i}"))
        for i in range(4): sg.append(I(f"v_exp_f32 v{GATE+4*i}, v{GATE+4*i}"))
        for i in range(4): sg.append(I(f"v_add_f32 v{GATE+4*i}, 1.0, v{GATE+4*i}"))
        for i in range(4): sg.append(I(f"v_rcp_f32 v{GATE+4*i+1}, v{GATE+4*i}"))
        for i in range(4): sg.append(I(f"v_sub_f32 v{GATE+4*i+2}, 1.0, v{GATE+4*i+1}"))
        tl.at(s8 + 11, sg)
        for j in range(4):
            tl.at(s8 + 8 * (2 * j + 3) + 2, self.epi_pair(R[2 * j], R[2 * j + 1], R[1 + 4 * (j // 2)], j % 2))
        tl.seq_at(s8 + 8 * 7 + 2.5, self.hstore(R[1], 0, "hs0", True))
        B0 = tl.n()
        self.barrier(B0 - 16, vm=["qs0"])
        accB = [R[0], R[3], R[2], R[8], R[4], R[1]]
        for kp in range(9):
            ss = kp // 3
            if kp % 3 == 0: tl.at(tl.n() + 0.1, self.stamp(f"B{ss}"))
            for g in range(6):
                buf = WF[G % 3]
                if g < 4:
                    a = aQKVtr if g < 3 else aCtr
                    offs = [((kp % 3) * 64 + ks * 32 + i * 4) * 144 + (48 * g if g < 3 else 0) for ks in range(2) for i in range(2)]
                else:
                    a = aGUtr
                    offs = [(((kp % 3) * 2 + ks) * 2 + (g - 4)) * 1024 + i * 512 for ks in range(2) for i in range(2)]
                b = self.group(accB[g], buf, kp, kp == 0, g in (1, 2, 3), self.trs(buf, a, offs), f"B{kp}_{g}")
                if kp % 3 == 2 and kp < 8:
                    if g == 2: tl.at(b - 15.9, I(f"v_add_u32 v{aQKVtr}, {192*144}, v{aQKVtr}"))
                    if g == 3: tl.at(b - 15.9, I(f"v_add_u32 v{aCtr}, {192*144}, v{aCtr}"))
                    if g == 5:
                        d = GUB[ss + 1] - GUB[ss]
                        tl.at(b - 15.9, I(f"v_add_u32 v{aGUtr}, {d}, v{aGUtr}" if d > 0 else f"v_subrev_u32 v{aGUtr}, {-d}, v{aGUtr}"))
                G += 1
        tl.seq_at(B0 + 19, self.hstore(R[5], 1, "hs0", True))
        tl.seq_at(B0 + 20, self.qkv_batch(2))
        self.barrier(B0 + 128, vm=["qs1"])
        tl.seq_at(B0 + 128, self.hc_batch(0))
        self.barrier(B0 + 272, lg=["B5_5"], vm=["qs2", "hs0"], post=self.flag_publish(1))
        tl.seq_at(B0 + 272, self.hc_batch(1))
        pc = [I(f"s_mul_i32 s{U0}, s{NT}, 288")]
        for j in range(9):
            pc += Is(f"v_add_u32 v{vT}, {64*j}, v{L}\nv_mul_u32_u24 v{vT2}, 3641, v{vT}\nv_lshrrev_b32 v{vT2}, 16, v{vT2}\nv_mul_u32_u24 v{aWD[j]}, 18, v{vT2}\n"
                     f"v_sub_u32 v{vT}, v{vT}, v{aWD[j]}\nv_mul_u32_u24 v{vT2}, 1152, v{vT2}\nv_lshl_add_u32 v{vT}, v{vT}, 4, v{vT2}\ns_sub_u32 s{U1}, s{U0}, {(j%4)*1024}\nv_add_u32 v{aWD[j]}, s{U1}, v{vT}")
        pc += Is(f"v_lshrrev_b32 v{vT}, 2, v{L}\nv_mul_u32_u24 v{vT}, 288, v{vT}\nv_and_b32 v{vT2}, 3, v{L}\nv_lshl_add_u32 v{aP2tr}, v{vT2}, 3, v{vT}")
        tl.at(B0 + 60, pc)
        C0 = tl.n()
        self.barrier(C0 - 16, lg=["B8_5"], vm=["hc0"])
        Qb, Kb, Vb, Cb, G8, U8 = accB
        accC = [[R[5], R[6], R[7], R[9]], [Kb, Vb, Cb, U8]]
        for hc in range(2):
            for kp in range(9):
                hs = 3 * hc + kp // 3
                if kp % 3 == 0: tl.at(tl.n() + 0.1, self.stamp(f"C{hs}"))
                for g in range(4):
                    buf = WF[G % 3]; tile, mat = g // 2, g % 2
                    offs = [((kp % 3) * 2 + ks) * 4096 + mat * 2048 + i * 1024 for ks in range(2) for i in range(2)]
                    b = self.group(accC[hc][g], buf, kp, kp == 0, False, self.trs(buf, aHCtr[tile], offs), f"C{hc}_{kp}_{g}")
                    if kp % 3 == 2 and mat == 1 and hs < 5:
                        d = HCS[(hs + 1) % 3] - HCS[hs % 3]; a = aHCtr[tile]
                        tl.at(b - 15.9, I(f"v_add_u32 v{a}, {d}, v{a}" if d > 0 else f"v_subrev_u32 v{a}, {-d}, v{a}"))
                    G += 1
        CB = lambda hs: C0 + 96 * hs - 16
        C1 = C0 + 288
        tmps = [aQKVd, aE]
        k1 = Is(f"s_lshl_b32 s{U0}, s{W}, 12\ns_add_u32 s{U0}, s{U0}, {MISC}\nv_and_b32 v{vT}, 1, v{L}\nv_lshlrev_b32 v{vT}, 8, v{vT}\nv_and_b32 v{vT2}, 48, v{L}\n"
                f"v_add3_u32 v{vT}, v{vT}, v{vT2}, s{U0}\nv_and_b32 v{vT2}, 15, v{L}\nv_lshl_add_u32 v{vT2}, v{vT2}, 2, s{U0}")
        tl.at(C0 - 24, k1)
        tl.at(C0 - 8, Atom(Is("s_mov_b32 exec_lo, 0x03000300\ns_mov_b32 exec_hi, 0x03000300") +
                           [I(f"ds_write_b128 v{vT}, {vr(Cb+4*i)} offset:{64*i}", tag="tw") for i in range(4)] + [I("s_mov_b64 exec, -1")]))
        k1 = Is(f"v_lshl_add_u32 v{aMisc}, v{L}, 4, s{U0}\nv_lshlrev_b32 v{aL16}, 4, v{L}\nv_mov_b32 v{aKV}, 0x3f803f80")
        k1 += self.phi_block([Kb + r for r in range(16)], tmps)
        k1 += [I(f"v_cvt_pk_bf16_f32 v{Kb+r}, v{Kb+2*r}, v{Kb+2*r+1}") for r in range(8)]
        k1 += [I(f"v_cvt_pk_bf16_f32 v{Vb+r}, v{Vb+2*r}, v{Vb+2*r+1}") for r in range(8)]
        for r in range(8):
            k1 += [I(f"v_cvt_pk_bf16_f32 v{Vb+8+r}, v{Cb+2*r}, v{Cb+2*r+1}"), I(f"v_cndmask_b32_e64 v{Vb+8+r}, v{Vb+8+r}, v{aKV}, {MASK2}")]
        k1 += self.phi_block([Cb + r for r in range(16)], tmps)
        k1 += [I(f"v_cvt_pk_bf16_f32 v{Cb+r}, v{Cb+2*r}, v{Cb+2*r+1}") for r in range(8)]
        tl.at(C0 - 7.9, k1)
        D = [Kb + 8, Kb + 12, Cb + 8, Cb + 12]
        km = []
        for j in range(2):
            for d, (a, b) in zip(D, ((Kb, Vb), (Kb, Vb + 8), (Cb, Vb), (Cb, Vb + 8))):
                km.append(I(f"{MF} {vr(d)}, {vr(a+4*j)}, {vr(b+4*j)}, {'0' if j == 0 else vr(d)}"))
        kvp = opt.get("kvp", 150)
        tl.at(C0 + kvp, km)
        QX = Vb + 8
        tl.at(C0 + kvp + 9, [I(f"ds_read2_b32 {vr(QX+2*i,2)}, v{vT2} offset0:{16*i} offset1:{64+16*i}", tag="tr") for i in range(4)])
        tl.at(C0 + kvp + 10, [I(f"ds_write_b128 v{aMisc}, {vr(D[t])} offset:{1024*t}", tag="kw") for t in range(4)])
        tl.seq_at(CB(0), self.hc_batch(2))
        self.barrier(CB(1), lg=["C0_2_3"], vm=["hc1"])
        tl.seq_at(CB(1), self.hc_batch(3) + self.wd_batch(0)[:4])
        self.barrier(CB(2), lg=["C0_5_3", "kw"], vm=["hc2"])
        tl.at(CB(2) - 8, Is(f"s_add_u32 s{U0}, s{MW1K}, {MISC}\nv_add_u32 v{vT}, s{U0}, v{aL16}"))
        tl.at(CB(2), [I(f"ds_read_b128 {vr(Kb+4*a)}, v{vT} offset:{4096*a}", tag="kr") for a in range(4)])
        red = [waitlgkm("kr")]
        for a in range(1, 4): red += [I(f"v_add_f32 v{Kb+r}, v{Kb+r}, v{Kb+4*a+r}") for r in range(4)]
        red += Is(f"s_lshl_b32 s{T3}, s{N}, 3\ns_add_u32 s{T3}, s{T3}, s{MT}\ns_lshl_b32 s{T3}, s{T3}, 12\ns_add_u32 s{T3}, s{T3}, s{MW1K}\ns_add_u32 s{T3}, s{T3}, {KV_OFF}")
        red += [costed(I(f"buffer_store_dwordx4 {vr(Kb)}, v{aL16}, {sWS}, s{T3} offen sc1", tag="kvs"), self.cST, True)]
        for x in red: x.dl = CB(2) + 26
        tl.at(CB(2) + 12, red)
        tl.seq_at(CB(2) + 12.1, self.hc_batch(4) + self.wd_batch(0)[4:])
        q1 = self.epi_pair(G8, U8, G8, 0) + [waitlgkm("tr")] + self.phi_block([Qb + r for r in range(16)], tmps) + self.phi_block([QX + r for r in range(8)], tmps)
        for i in range(4):
            q1 += Is(f"v_cvt_pk_bf16_f32 v{Qb+4*i}, v{Qb+4*i}, v{Qb+4*i+1}\nv_cvt_pk_bf16_f32 v{Qb+4*i+1}, v{Qb+4*i+2}, v{Qb+4*i+3}\n"
                     f"v_cvt_pk_bf16_f32 v{Qb+4*i+2}, v{QX+2*i}, v{QX+2*i+1}\nv_cndmask_b32_e64 v{Qb+4*i+2}, 0, v{Qb+4*i+2}, {MASKQ0}\nv_mov_b32 v{Qb+4*i+3}, 0")
        tl.at(C0 + kvp + 11, q1)
        hpoll = Is(f"s_lshr_b32 s{U0}, s{M2}, 1\ns_lshl_b32 s{U0}, s{U0}, 5\ns_lshl_b32 s{U1}, s{Q}, 3\ns_add_u32 s{U0}, s{U0}, s{U1}\ns_lshl_b32 s{U0}, s{U0}, 7\ns_add_u32 s{U0}, s{U0}, {FL_OFF}\n"
                   f"v_and_b32 v{vP}, 7, v{L}\nv_lshl_add_u32 v{vP}, v{vP}, 7, s{U0}")
        tl.at(CB(2) + 30, hpoll + Is(f"v_lshlrev_b32 v{vP2}, 2, v{L}"))
        tl.at(CB(2) + 50, self.poll_issue(("p0", vF2, vP2, sDBG), ("p1", vF, vP, sWS)))
        self.barrier(CB(3), lg=["C0_8_3"], vm=["hc3", "kvs"], pre=self.poll_check(("p0", vF2, vP2, sDBG, "eq", "0x01010101"), ("p1", vF, vP, sWS, "le", 1)), post=self.flag_publish(2))
        tl.seq_at(CB(3), self.hc_batch(5) + self.wd_batch(1)[:4])
        tl.at(C1 + 1, self.epi_pair(R[5], R[6], R[6], 0) + self.epi_pair(R[7], R[9], R[6], 1))
        tl.at(C1 + 0.5, Is(f"s_lshl_b32 s{U0}, s{Q}, 7\ns_lshl_b32 s{U1}, s{M2}, 3\ns_add_u32 s{U0}, s{U0}, s{U1}\ns_lshl_b32 s{U1}, s{W}, 1\ns_add_u32 s{U0}, s{U0}, s{U1}\n"
                           f"s_mul_i32 s{U0}, s{U0}, 40960\nv_add_u32 v{aP2H}, s{U0}, v{aL16}\n"
                           f"s_lshl_b32 s{U0}, s{N}, 7\ns_add_u32 s{U0}, s{U0}, {FL_OFF}\nv_and_b32 v{vP2}, 7, v{L}\nv_lshl_add_u32 v{vP2}, v{vP2}, 12, s{U0}"))
        tl.seq_at(C1 + 56, self.hstore(R[6], 16, "hs1"))
        tl.at(CB(4) - opt.get("p2lead", 20), self.poll_issue(("p2", vF2, vP2, sWS)))
        self.barrier(CB(4), lg=["C1_2_3"], vm=["hc4"], pre=self.poll_check(("p2", vF2, vP2, sWS, "le", 2)))
        kvl = []
        for m in range(8):
            dst = (R[5] if m < 4 else R[7]) + 4 * (m % 4)
            pre = Is(f"s_lshl_b32 s{TK}, s{N}, 15\ns_add_u32 s{TK}, s{TK}, s{MW1K}") if m == 0 else []
            kvl.append(pre + [I(f"s_add_u32 s{T3}, s{TK}, {KV_OFF + 4096*m}"), costed(I(f"buffer_load_dwordx4 {vr(dst)}, v{aL16}, {sWS}, s{T3} offen sc1", tag="kvl"), 4.4, True)])
        tl.seq_at(CB(4), kvl + self.wd_batch(1)[4:] + self.h_batch(0) + self.h_batch(1))
        sm = [waitvm("kvl")]
        for m in range(1, 8):
            src = (R[5] if m < 4 else R[7]) + 4 * (m % 4)
            sm += [I(f"v_add_f32 v{R[5]+r}, v{R[5]+r}, v{src+r}") for r in range(4)]
        sm += [I(f"ds_write_b128 v{vT}, {vr(R[5])}", tag="sw")]
        tl.at(CB(5) - 24, sm)
        self.barrier(CB(5), lg=["C1_5_3", "sw"], vm=["hc5", "hs1"], post=self.flag_publish(3))
        tl.at(CB(5) - 8, I(f"v_add_u32 v{vT2}, {MISC}, v{aL16}"))
        tl.at(CB(5), [I(f"ds_read_b128 {vr(R[9]+4*t)}, v{vT2} offset:{1024*t}", tag="sr") for t in range(4)])
        nm = [waitlgkm("sr")]
        for a, (t0, t1) in enumerate(((0, 2), (1, 3))):
            for h, t in enumerate((t0, t1)):
                for z in range(2): nm.append(I(f"v_cvt_pk_bf16_f32 v{R[7]+4*a+2*h+z}, v{R[9]+4*t+2*z}, v{R[9]+4*t+2*z+1}"))
        tl.at(CB(5) + 12, nm)
        nm = []
        for i in range(4):
            nm.append(I(f"{MF} {vr(R[9]+4*i)}, {vr(R[7]+4)}, {vr(Qb+4*i)}, 0"))
            nm.append(I(f"{MF} {vr(R[5]+4*i)}, {vr(R[7])}, {vr(Qb+4*i)}, 0"))
        tl.at(CB(5) + 22, nm)
        fo = []
        for i in range(4): fo.append(I(f"v_add_f32 v{R[9]+4*i+2}, {EPS}, v{R[9]+4*i+2}"))
        for i in range(4): fo.append(I(f"v_rcp_f32 v{R[9]+4*i+2}, v{R[9]+4*i+2}"))
        for i in range(4): fo.append(I(f"v_mul_f32 v{R[9]+4*i+2}, v{R[9]+4*i+2}, v{GATE+4*i+1}"))
        for i in range(4):
            for r in range(4): fo.append(I(f"v_mul_f32 v{R[5]+4*i+r}, v{R[5]+4*i+r}, v{R[9]+4*i+2}"))
            for r in range(2): fo.append(I(f"v_mul_f32 v{R[9]+4*i+r}, v{R[9]+4*i+r}, v{R[9]+4*i+2}"))
            for h in range(2): fo.append(I(f"v_cvt_pk_bf16_f32 v{G8+4*i+2+h}, v{R[5]+4*i+2*h}, v{R[5]+4*i+2*h+1}"))
            fo.append(I(f"v_cvt_pk_bf16_f32 v{R[9]+4*i}, v{R[9]+4*i}, v{R[9]+4*i+1}"))
        tl.at(CB(5) + 34, fo)
        tl.at(CB(5) + 1, Is(f"s_lshl_b32 s{U0}, s{Q}, 7\ns_lshl_b32 s{U1}, s{MT}, 4\ns_add_u32 s{U0}, s{U0}, s{U1}\ns_lshl_b32 s{U1}, s{W}, 2\ns_add_u32 s{U0}, s{U0}, s{U1}\n"
                            f"s_lshl_b32 s{U0}, s{U0}, 9\ns_bfe_u32 s{U1}, s{N}, 0x20001\ns_lshl_b32 s{U1}, s{U1}, 7\ns_add_u32 s{U0}, s{U0}, s{U1}\n"
                            f"s_and_b32 s{U1}, s{N}, 1\ns_lshl_b32 s{U1}, s{U1}, 2\ns_add_u32 s{U0}, s{U0}, s{U1}\ns_add_u32 s{U0}, s{U0}, {E_OFF}\n"
                            f"v_and_b32 v{aE}, 15, v{L}\nv_lshl_add_u32 v{aE}, v{aE}, 3, s{U0}"))
        tl.seq_at(CB(5), self.h_batch(2))
        tl.seq_at(CB(5) + 62, self.hstore(G8, 24, "hs2") + [Atom(Is("s_mov_b32 exec_lo, 0xffff0000\ns_mov_b32 exec_hi, 0") +
                  [costed(I(f"buffer_store_dword v{R[9]+4*i}, v{aE}, {sWS}, 0 offen offset:{512*i} sc1", tag="hs2"), 8) for i in range(4)] + [I("s_mov_b64 exec, -1")])])
        D0 = tl.n()
        WFD = [R[6], Qb, 24]
        accreg = [40, 44] + [R[7] + 4 * k for k in range(4)] + [R[5] + 4 * k for k in range(4)] + [R[9] + 4 * k for k in range(4)] + [G8 + 4 * k for k in range(4)]
        acc = lambda i, t: accreg[2 * t + i]
        GD = 0; DB = {}
        for st in range(10):
            s0 = tl.n(); DB[st] = s0 - 16
            tl.at(s0 + 0.1, self.stamp(f"D{st}"))
            for t in range(9):
                buf = WFD[GD % 3]; base = tl.n(); tag = f"D{st}_{t}"
                offs = [k * 9216 + i * 4608 + 32 * t for k in range(4) for i in range(2)]
                for rd in self.trs(buf, aP2tr, offs):
                    rd.tag = tag; rd.dl = base - 6; tl.at(base - 16, rd)
                if t == 8 and st < 9:
                    d = P2S[(st + 1) % 4] - P2S[st % 4]
                    tl.at(base - 15.9, I(f"v_add_u32 v{aP2tr}, {d}, v{aP2tr}" if d > 0 else f"v_subrev_u32 v{aP2tr}, {-d}, v{aP2tr}"))
                if t == 0: tl.at(base - 1.1, waitvm(f"h{st}"))
                tl.at(base - 1, waitlgkm(tag))
                for i in range(2):
                    for k in range(4):
                        d = vr(acc(i, t)); c = "0" if (st == 0 and k == 0) else d
                        tl.mfma(I(f"{MF} {d}, {vr(buf+4*k)}, {self.hreg(st,k,i)}, {c}"))
                GD += 1
        exl = Is(f"s_mul_i32 s{U0}, s{W}, 1152\ns_mov_b32 exec_hi, 15")
        for h in range(2): exl += self.dma(aWD[0], sWO, f"s{T3}", U0, EXB + 576 * h, "ex", 6, pre=[I(f"s_add_u32 s{T3}, s{REX}, {(18*h+32)*1152}")])
        exl = Atom(exl + [I("s_mov_b32 exec_hi, -1")])
        def inter(a, b):
            o = []
            for k in range(max(len(a), len(b))):
                if k < len(a): o.append(a[k])
                if k < len(b): o.append(b[k])
            return o
        self.barrier(DB[0], lg=["C1_8_3"], vm=["wd0"])
        tl.seq_at(DB[0], self.wd_batch(2))
        tl.at(D0 + 1, self.epi_pair(Kb, Vb, Vb, 0) + self.epi_pair(Cb, U8, Vb, 1))
        self.barrier(DB[1], vm=["wd1"])
        tl.seq_at(DB[1] - 0.3, self.hstore(Vb, 32, "hs3"))
        tl.at(DB[1] - 0.2, self.poll_issue(("p3", vF, vP, sWS)))
        tl.seq_at(DB[1], inter(self.wd_batch(3), self.h_batch(3)))
        self.barrier(DB[2], vm=["wd2", "hs2", "hs3"], pre=self.poll_check(("p3", vF, vP, sWS, "le", 3)), post=self.flag_publish(4))
        tl.seq_at(DB[2], inter(self.wd_batch(4), self.h_batch(4)) + [exl])
        self.barrier(DB[3], vm=["wd3"])
        tl.seq_at(DB[3], inter(self.wd_batch(5), self.h_batch(5)))
        tl.at(DB[4] - opt.get("p4lead", 30), self.poll_issue(("p4", vF, vP, sWS)))
        self.barrier(DB[4], vm=["wd4"], pre=self.poll_check(("p4", vF, vP, sWS, "le", 4)))
        EH = Kb; EW = Vb
        ewreg = lambda t: (Kb + 4 + 2 * t) if t < 6 else (Cb + 2 * (t - 6))
        tl.at(DB[4] - 20, Is(f"s_lshl_b32 s{U0}, s{Q}, 7\ns_lshl_b32 s{U1}, s{M2}, 3\ns_add_u32 s{U0}, s{U0}, s{U1}\ns_lshl_b32 s{U1}, s{W}, 1\ns_add_u32 s{U0}, s{U0}, s{U1}\n"
                             f"s_lshl_b32 s{U0}, s{U0}, 9\ns_add_u32 s{TK}, s{U0}, {E_OFF}\nv_lshlrev_b32 v{aE}, 3, v{L}"))
        ehl = [[costed(I(f"buffer_load_dwordx2 {vr(EH+2*i,2)}, v{aE}, {sWS}, s{TK} offen offset:{512*i} sc1", tag="eh"), 3)] for i in range(2)]
        for st in range(4, 8):
            tl.seq_at(DB[st], inter(self.wd_batch(st + 2), self.h_batch(st + 2)) + (ehl if st == 4 else []))
            self.barrier(DB[st + 1], vm=[f"wd{st+1}"] + (["ex"] if st == 5 else []))
        self.barrier(DB[9], vm=["wd9"])
        SX = DB[8] + 16
        tl.at(SX - 20, Is(f"v_lshrrev_b32 v{vT}, 2, v{L}\nv_mul_u32_u24 v{vT}, 288, v{vT}\nv_and_b32 v{vT2}, 3, v{L}\nv_lshl_add_u32 v{vT}, v{vT2}, 3, v{vT}\nv_add_u32 v{vT}, {EXB}, v{vT}"))
        for t in range(9):
            tl.at(SX + 8 * t - 4, I(f"ds_read_b64_tr_b16 {vr(ewreg(t),2)}, v{vT} offset:{32*t}", tag=f"ew{t}"))
            tl.at(SX + 8 * t + 12, ([waitvm("eh")] if t == 0 else []) + [waitlgkm(f"ew{t}")] +
                  [I(f"v_mfma_f32_16x16x16_bf16 {vr(acc(i,t))}, {vr(ewreg(t),2)}, {vr(EH+2*i,2)}, {vr(acc(i,t))}") for i in range(2)])
        S9 = DB[9] + 16
        GRP = U1
        tl.at(S9 - 40, Is(f"s_lshl_b32 s{GRP}, s{M2}, 2\ns_add_u32 s{GRP}, s{GRP}, s{NT}\ns_lshl_b32 s{GRP}, s{GRP}, 2\ns_add_u32 s{U0}, s{GRP}, s{W}\ns_lshl_b32 s{U0}, s{U0}, 2\n"
                          f"s_add_u32 s{U0}, s{U0}, s{Q}\ns_mul_i32 s{U0}, s{U0}, 9216\ns_add_u32 s{U0}, s{U0}, {XB_OFF}\nv_add_u32 v{aH}, s{U0}, v{aL16}\n"
                          f"s_add_u32 s{U0}, s{MP2}, {OWN}\nv_add_u32 v{aMisc}, s{U0}, v{aL16}\ns_mov_b32 s28, s40\ns_mov_b32 s29, s41"))
        tl.at(S9 - 20, Atom(Is(f"s_cmp_eq_u32 s{W}, s{Q}\ns_cselect_b32 s30, 0, s42")))
        PKR = [U8 + 4 * (t % 4) for t in range(9)]
        for t in range(9):
            p = S9 + 8 * t + 10
            cv = [I(f"v_cvt_pk_bf16_f32 v{PKR[t]+2*i+h}, v{acc(i,t)+2*h}, v{acc(i,t)+2*h+1}") for i in range(2) for h in range(2)]
            tl.at(p, cv + [I(f"s_mov_b32 s{T3}, {(t//4)*4096}"), costed(I(f"buffer_store_dwordx4 {vr(PKR[t])}, v{aH}, {sXB}, s{T3} offen offset:{(t%4)*1024} sc1", tag="xs"), 6),
                           I(f"ds_write_b128 v{aMisc}, {vr(PKR[t])} offset:{1024*t}", tag="xw")])
        END = tl.n() + 10
        fin = []
        F = lambda s: fin.extend(Is(s))
        fin += self.stamp("mainend")
        F(f"s_add_u32 s{U0}, s{GRP}, s{Q}\ns_mul_i32 s{U0}, s{U0}, {4*9216}\ns_lshl_b32 s{T0}, s{W}, 11\ns_add_u32 s{U0}, s{U0}, s{T0}\ns_add_u32 s{U0}, s{U0}, {XB_OFF}\nv_add_u32 v{aP2H}, s{U0}, v{aL16}")
        for z in range(3): F(f"s_add_u32 s{T1+z}, s{Q}, {z+1}\ns_and_b32 s{T1+z}, s{T1+z}, 3\ns_mul_i32 s{T1+z}, s{T1+z}, 9216")
        F(f"s_mul_i32 s{U0}, s{Q}, 9216\ns_add_u32 s{U0}, s{U0}, s{T0}\ns_add_u32 s{U0}, s{U0}, {OWN}\nv_add_u32 v{aKV}, s{U0}, v{aL16}")
        F(f"s_lshl_b32 s{U0}, s{MT}, 5\ns_lshr_b32 s{TK}, s{J}, 2\ns_add_u32 s{U0}, s{U0}, s{TK}\ns_lshl_b32 s{U0}, s{U0}, 7\ns_add_u32 s{U0}, s{U0}, {FL_OFF}\nv_and_b32 v{vP}, 3, v{L}\nv_lshl_add_u32 v{vP}, v{vP}, 10, s{U0}")
        SEL = 24
        F(f"v_bfe_u32 v1, v{L}, 2, 2\nv_lshrrev_b32 v2, 4, v{L}\nv_cmp_eq_u32 vcc, v1, v2\nv_and_b32 v3, 1, v{L}\nv_lshlrev_b32 v3, 4, v3\nv_mov_b32 v4, 0x3f80\nv_lshlrev_b32 v4, v3, v4\nv_cndmask_b32 v4, 0, v4, vcc")
        F(f"v_and_b32 v3, 2, v{L}\nv_cmp_eq_u32 vcc, 0, v3\nv_mov_b32 v{SEL+2}, 0\nv_mov_b32 v{SEL+3}, 0\nv_cndmask_b32 v{SEL}, 0, v4, vcc\nv_cndmask_b32 v{SEL+1}, v4, 0, vcc")
        F(f"v_mov_b32 v{SEL+4}, 0\nv_mov_b32 v{SEL+5}, 0\nv_mov_b32 v{SEL+6}, v{SEL}\nv_mov_b32 v{SEL+7}, v{SEL+1}")
        F(f"s_lshl_b32 s{U0}, s{W}, 12\ns_add_u32 s{U0}, s{U0}, {FIN}\nv_and_b32 v1, 15, v{L}\nv_mul_u32_u24 v1, 112, v1\nv_lshl_add_u32 v1, v2, 3, v1\nv_add_u32 v1, s{U0}, v1")
        F(f"s_lshl_b32 s{TK}, s{M2}, 7\ns_lshl_b32 s{TH}, s{Q}, 5\ns_add_u32 s{TK}, s{TK}, s{TH}\ns_mul_i32 s{TK}, s{TK}, 1152\ns_mul_i32 s{TH}, s{NT}, 288\ns_add_u32 s{TK}, s{TK}, s{TH}\ns_lshl_b32 s{TH}, s{W}, 6\ns_add_u32 s{TK}, s{TK}, s{TH}")
        for j in range(3):
            F(f"v_add_u32 v8, {64*j}, v{L}\nv_mul_u32_u24 v9, 10923, v8\nv_lshrrev_b32 v9, 16, v9\nv_mul_u32_u24 v10, 6, v9\nv_sub_u32 v8, v8, v10\nv_lshlrev_b32 v8, 4, v8")
            F(f"v_mul_u32_u24 v10, 112, v9\nv_add3_u32 v{2+j}, v10, v8, s{U0}\nv_mul_u32_u24 v10, 1152, v9\nv_add3_u32 v{5+j}, v10, v8, s{TK}")
        fin += [waitlgkm("xw"), waitvm("xs"), I("s_barrier")] + self.stamp("drained") + self.flag_publish(5)
        GBR = R[0]; SUM = R[4]
        for u in range(3): fin.append(I(f"ds_read_b128 {vr(GBR+16*u)}, v{aKV} offset:{1024*u}", tag=f"go{u}"))
        fin += self.poll_issue(("p5", vF, vP, sWS)) + self.poll_check(("p5", vF, vP, sWS, "le", 5)) + [I("s_barrier")] + self.stamp("polled")
        for u in range(3):
            for z in range(3):
                fin.append(I(f"buffer_load_dwordx4 {vr(GBR+16*u+4+4*z)}, v{aP2H}, {sWS}, s{T1+z} offen offset:{1024*u} sc1", tag=f"g{u}{z}"))
        for u in range(3):
            fin.append(waitlgkm(f"go{u}"))
            for h in range(2): fin.append(I(f"{MF} {vr(SUM+8*u+4*h)}, {vr(SEL+4*h)}, {vr(GBR+16*u)}, 0"))
        for u in range(3):
            for z in range(3):
                fin.append(waitvm(f"g{u}{z}"))
                for h in range(2): fin.append(I(f"{MF} {vr(SUM+8*u+4*h)}, {vr(SEL+4*h)}, {vr(GBR+16*u+4+4*z)}, {vr(SUM+8*u+4*h)}"))
        for u in range(3):
            for h in range(2):
                b = SUM + 8 * u + 4 * h
                F(f"v_cvt_pk_bf16_f32 v{b}, v{b}, v{b+1}\nv_cvt_pk_bf16_f32 v{b+1}, v{b+2}, v{b+3}")
                fin.append(I(f"ds_write_b64 v1, {vr(b,2)} offset:{32*u + 16*112*h}", tag="fw"))
        fin += self.stamp("summed")
        for j in range(3): fin.append(I(f"ds_read_b128 {vr(32+4*j)}, v{2+j}", tag=f"fr{j}"))
        for j in range(3):
            fin.append(waitlgkm(f"fr{j}"))
            fin.append(I(f"buffer_store_dwordx4 {vr(32+4*j)}, v{5+j}, {sOUT}, 0 offen", tag="o"))
        if opt.get("stamps"):
            F("s_waitcnt vmcnt(0)")
            fin += self.stamp("end"); F("s_waitcnt lgkmcnt(0)"); fin += self.stamp("x")
            sys.stderr.write("STAMPS " + ",".join(self.stamps[:-1]) + "\n")
        fin.append(I("s_endpgm"))
        tl.at(END, Atom(fin))
        rep = {}
        ins = self.pro + schedule(tl, rep)
        ins = resolve_waits(ins)
        ins = hoist_m0(ins)
        ins, added = fix_hazards(ins, verbose=opt.get("verbose"))
        errs = check_waits(ins) + check_m0(ins)
        slow, _ = fix_hazards(self.slow)
        sys.stderr.write(f"instrs={len(ins)} mfma={sum(x.kind=='mfma' for x in ins)} nop_states_added={added} errors={errs} overfull_gaps={rep['over']}\n")
        if opt.get("rep"):
            sys.stderr.write(f"A0={A0} B0={B0} C0={C0} D0={D0}\n")
            sys.stderr.write("slack(issue_last, wait, diff): " + " ".join(f"{t}:{v}" for t, v in rep["slack"].items()) + "\n")
            for k, v in sorted(rep["stat"].items()): sys.stderr.write(f"  gaps {72*k}..: {' '.join(v)}\n")
        head = open("gated_mix__linear_attn_block__glu_gated_bilinear__prompt.s.ref").read().split("; Override")[0]
        txt = head + "; @launch grid=(256,1,1) block=(256,1,1) lds=163840\n"
        txt += f'.amdgcn_target "amdgcn-amd-amdhsa--gfx950"\n.text\n.globl {NAME}\n.p2align 8\n.type {NAME},@function\n{NAME}:\n'
        txt += text_of(ins) + text_of(slow) + "L_end:\n  s_endpgm\n"
        txt += f'''.section .rodata,"a"
.p2align 6
.amdhsa_kernel {NAME}
  .amdhsa_next_free_vgpr 512
  .amdhsa_next_free_sgpr 100
  .amdhsa_accum_offset 256
  .amdhsa_float_denorm_mode_32 3
  .amdhsa_group_segment_fixed_size 0
  .amdhsa_kernarg_size 88
  .amdhsa_user_sgpr_count 2
  .amdhsa_user_sgpr_kernarg_segment_ptr 1
  .amdhsa_system_sgpr_workgroup_id_x 1
.end_amdhsa_kernel
'''
        return txt

if __name__ == "__main__":
    opt = {}
    out = sys.argv[1]
    for a in sys.argv[2:]:
        k, v = a.split("="); opt[k] = float(v) if "." in v else int(v)
    open(out, "w").write(Gen(opt).build())
```

```python
from asmlib import *

class Unit:
    def __init__(self, ins, pos, seq):
        self.ins = ins; self.pos = pos; self.seq = seq
        self.reads = set(); self.writes = set()
        for x in ins:
            self.reads |= (x.reads - self.writes) | x.reads; self.writes |= x.writes
        self.reads.discard(("exec", 0)); self.writes.discard(("exec", 0))
        self.prep = list(getattr(ins[0], "prep", [])) if len(ins) == 1 else [p for x in ins for p in getattr(x, "prep_outer", [])]
        for p in self.prep:
            self.reads -= p.writes
        for p in self.prep:
            self.reads |= p.reads
        ks = [x.kind for x in ins]
        self.vm = any(k == "vmem" for k in ks); self.ds = any(k == "ds" for k in ks)
        self.bar = any(x.op == "s_barrier" for x in ins)
        self.wait = any(k in ("waitvm", "waitlgkm") for k in ks)
        self.mf = any(k == "mfma" for k in ks)
        self.cost = max([getattr(x, "cost", 0) for x in ins])
        self.urgent = any(getattr(x, 'urgent', False) for x in ins)
        self.preds = []; self.dl = None; self.gap = None
        if len(ins) > 1 or self.bar: self.t = "X"
        elif self.vm: self.t = "D"
        elif self.ds: self.t = "W" if "write" in ins[0].op else "T"
        elif self.mf: self.t = "M"
        elif ks[0] == "valu": self.t = "E" if ins[0].op.startswith(TRANS) else "V"
        else: self.t = "S"

def fits(cur, t, prev_vv):
    c = cur + [t]
    nS, nT, nV, nE, nD = (c.count(k) for k in "STVED")
    if any(k in c for k in "XWM"): return len(c) == 1
    if nD: return len(c) == 1
    if nE: return nE == 1 and nT == 0 and nV == 0 and nS <= 1
    if nT: return nT == 1 and nV <= 1 and nS <= 1
    if nV == 2: return nS <= 1 and not prev_vv
    return nV <= 1 and nS + nV <= 3

def schedule(tl, report=None, stgap=0, BK=80, GAP=16.3, pipe0=0.0, fill=True):
    items = sorted(tl.items, key=lambda t: (t[0], t[1]))
    U = []
    for pos, seq, ins, atomic in items:
        if atomic: U.append(Unit(ins, pos, seq))
        else:
            for x in ins: U.append(Unit([x], pos, seq))
    mf = tl.mf; n = len(mf); mfset = set(mf)
    tagw = {}
    for u in U:
        for x in u.ins:
            if x.tag is not None and x.kind in ("vmem", "ds"): tagw.setdefault(x.tag, set()).update(x.writes)
    for u in U:
        for x in u.ins:
            if x.tag is not None and x.kind in ("vmem", "ds"): u.writes = u.writes | {("tag", x.tag)}
            if x.kind in ("waitvm", "waitlgkm"):
                for tg in x.tags: u.reads = u.reads | {("tag", tg)}; u.writes = u.writes | tagw.get(tg, set())
    import math
    for u in U: u.e = min(n - 1, math.floor(u.pos)) if u.pos >= 0 else -1
    last_dsc = {}; SCRATCH = ('tw', 'tr', 'kw', 'kr', 'sw', 'sr', 'xw', 'cw', 'cr')
    lastw = {}; readers = {}; last_vm = last_ds = last_bar = None; since_bar = []; last_wait = {"v": None, "l": None}
    for u in U:
        P = set()
        for r in u.reads:
            if r in lastw: P.add(lastw[r])
        for r in u.writes:
            if r in lastw: P.add(lastw[r])
            for q in readers.get(r, []): P.add(q)
        ch = 'scr' if any(x.tag in SCRATCH for x in u.ins) else 'str'
        if u.ds and ch in last_dsc: P.add(last_dsc[ch])
        mem = u.vm or u.ds or u.wait or u.bar
        if mem and last_bar: P.add(last_bar)
        if u.bar:
            for q in since_bar: P.add(q)
        if u.vm or u.ds:
            for w in last_wait.values():
                if w is not None and getattr(w, "fence", False): P.add(w)
        P.discard(u); u.preds = list(P)
        for r in u.reads: readers.setdefault(r, []).append(u)
        for r in u.writes: lastw[r] = u; readers[r] = []
        if u.vm: last_vm = u
        if u.ds: last_dsc[ch] = u
        if True:
            u.fence = any(getattr(x, "fence", False) for x in u.ins)
            if u.fence:
                if last_wait["v"] is not None: u.preds.append(last_wait["v"])
                last_wait["v"] = u
        if u.bar: last_bar = u; since_bar = []
        elif u.wait: since_bar.append(u)
    byreg_r = {}; byreg_w = {}
    for k, m in enumerate(mf):
        for r in m.reads: byreg_r.setdefault(r, []).append(k)
        for r in m.writes: byreg_w.setdefault(r, []).append(k)
    import bisect
    def first_after(lst, e):
        i = bisect.bisect_right(lst, e); return lst[i] if i < len(lst) else None
    for u in U:
        d = n
        for r in u.writes:
            for tab in (byreg_r, byreg_w):
                if r in tab:
                    f = first_after(tab[r], u.e)
                    if f is not None: d = min(d, f)
        for r in u.reads:
            if r in byreg_w:
                f = first_after(byreg_w[r], u.e)
                if f is not None: d = min(d, f)
        if u.t in ("V", "E") and d < n and any(r in byreg_r and first_after(byreg_r[r], u.e) == d for r in u.writes): d = max(u.e + 1, d - 1)
        hard = min([getattr(x, "dl", n) for x in u.ins])
        u.dl = min(d, max(hard, u.e + 1)) - 1
    for u in reversed(U):
        for p in u.preds: p.dl = min(p.dl, u.dl)
    pregs = set(r for u in U for p in u.prep for r in p.writes)
    for u in U:
        if u.t != "X" and (u.reads | u.writes) & pregs: raise SystemExit("prep register used by plain unit: " + u.ins[0].text)
    wpos = {}
    for u in U:
        for x in u.ins:
            if x.kind == "waitvm":
                for tg in x.tags: wpos.setdefault(tg, u.pos)
    for u in U:
        u.need = min([wpos.get(x.tag, 1e9) + getattr(x, "bias", 0) for x in u.ins if x.kind == "vmem"] + [1e9])
        if u.vm and u.need >= 1e9: u.need = u.pos + 150
    for u in U: u.soft = min(u.dl, u.need - 40) if u.vm else u.dl
    for u in reversed(U):
        for p in u.preds: p.soft = min(p.soft, u.soft)
    sstate = {}; prep_gap = {}
    st_free = [-1e9]
    sim = {'t': 0.0, 'pf': pipe0, 'stall': 0.0}; done = []; tagdone = {}; stalls = []
    for u in U: u.lat = max([getattr(x, 'lat', 1200 if 'store' in x.op else 400) for x in u.ins if x.kind == 'vmem'] + [0])
    for u in U: u.isst = u.t == 'D' and 'store_dwordx4' in u.ins[0].op and not getattr(u.ins[0], 'nopace', False)
    out = []; pend = []; j = 0; vm_free = -1e9; prev_vv = False; over = 0; stat = {}
    rank = {"S": 0, "T": 1, "D": 1, "W": 1, "X": 1, "M": 1, "V": 2, "E": 2}
    Ts = [u for u in U if u.t == "T"]; tj = 0; tline = []
    for k in range(-1, n):
        if k >= 0: out.append(mf[k])
        while j < len(U) and U[j].e <= k: pend.append(U[j]); j += 1
        cur = []; placed = []
        last = k == n - 1 or k == -1
        ready = lambda u: all(p.gap is not None for p in u.preds)
        order_ok = lambda u: all(rank[p.t] <= rank[u.t] for p in u.preds if p.gap == k)
        state = {"forced": False}
        def missing(u): return [p for p in u.prep if any(sstate.get(r) != p.text for r in p.writes)]
        def put_prep(p):
            c = I(p.text); pu = Unit([c], k, 0); pu.gap = k
            if not fits(cur, "S", prev_vv): state["forced"] = True
            cur.append("S"); placed.append(pu)
            for r in p.writes: sstate[r] = p.text; prep_gap[r] = k
        def put(u):
            nonlocal vm_free
            if fill and u.wait and k >= 0:
                tags = [tg for x in u.ins if x.kind == "waitvm" for tg in x.tags]
                tc = max([tagdone.get(tg, 0.0) for tg in tags] + [0.0])
                while tc > sim['t'] and sim['pf'] < tc:
                    c = [v for v in sorted(pend, key=lambda v: (v.need, v.pos, v.seq)) if v.vm and v is not u and v.t in "DX" and not v.wait and v.cost and ready(v) and u not in v.preds]
                    if not c: break
                    put(c[0]); state["forced"] = True
            for p in missing(u): put_prep(p); state["forced"] = True
            for r in u.writes:
                if r in sstate: del sstate[r]
            if not (fits(cur, u.t, prev_vv) and order_ok(u)): state["forced"] = True
            u.gap = k; cur.append(u.t); placed.append(u); pend.remove(u)
            if u.vm:
                blk = max(0.0, sim['pf'] - sim['t'] - BK) if u.cost else 0.0
                sim['t'] += blk; sim['stall'] += blk
                sim['pf'] = max(sim['pf'], sim['t']) + 16 * u.cost
                c = max(sim['pf'] + u.lat, done[-1] if done else 0.0)
                if not all(x.nocount for x in u.ins if x.kind == "vmem"): done.append(c)
                for x in u.ins:
                    if x.kind == "vmem" and x.tag is not None: tagdone[x.tag] = c
            for x in u.ins:
                if x.kind == "waitvm":
                    tc = max([tagdone.get(tg, 0.0) for tg in x.tags])
                    if tc > sim['t']:
                        stalls.append(f"{'/'.join(x.tags)}@{k}:{int(tc - sim['t'])}"); sim['stall'] += tc - sim['t']; sim['t'] = tc
            if getattr(u, 'isst', False): st_free[0] = k + stgap
        def drain(cond):
            progress = True
            while progress:
                progress = False
                for u in sorted(pend, key=lambda u: (u.dl if u.dl <= k else u.soft, u.pos, u.seq)):
                    if ready(u) and cond(u): put(u); progress = True; break
        while tj < len(Ts) and Ts[tj].gap is not None: tj += 1
        def t_slack():
            dls = sorted(u.dl for u in Ts[tj:tj + 40] if u.gap is None and u.e <= k + 24)
            return all(d - k >= a + 1 for a, d in enumerate(dls))
        must_now = [u for u in pend if u.dl <= k]
        rdy = [u for u in sorted(pend, key=lambda u: (not u.urgent, u.need if u.vm else -1, u.pos, u.seq)) if u.t in "DXWM" and ready(u) and not (u.isst and st_free[0] > k)]
        nxt_vm = next((u for u in rdy if u.vm), None)
        if nxt_vm is not None and not nxt_vm.urgent:
            first = min((u for u in pend if u.vm and u.t in "DX" and not u.urgent), key=lambda u: (u.need, u.pos, u.seq), default=None)
            if first is not None and first.need < nxt_vm.need - 60 and not any("store" in x.op for x in first.ins): nxt_vm = None
        solo = [u for u in rdy if not u.vm or (u is nxt_vm and not missing(u) and (u.urgent or sim['pf'] - sim['t'] <= BK))]
        def preps():
            if nxt_vm is not None and nxt_vm.gap is None:
                for p in missing(nxt_vm):
                    if fits(cur, "S", prev_vv) and not state["forced"]: put_prep(p)
        if last or any(u.t != "S" for u in must_now):
            drain(lambda u: u.dl <= k or last)
            preps()
            if not state["forced"]: drain(lambda u: u.t in "STVE" and fits(cur, u.t, prev_vv) and order_ok(u))
        elif solo and (not must_now or solo[0].urgent):
            drain(lambda u: u.dl <= k)
            if not t_slack():
                c = [u for u in sorted(pend, key=lambda u: (u.dl, u.pos, u.seq)) if u.t == "T" and ready(u)]
                if c: put(c[0])
            put(solo[0])
        else:
            drain(lambda u: u.dl <= k)
            preps()
            drain(lambda u: u.t in "STVE" and fits(cur, u.t, prev_vv) and order_ok(u))
        if not state["forced"]: placed.sort(key=lambda u: rank[u.t])
        elif k >= 0 and k < n - 1:
            over += 1; stat.setdefault(k // 72, []).append("".join(cur))
        prev_vv = cur.count("V") == 2
        for u in placed: out += u.ins
        if k >= 0: sim['t'] += GAP + (4.5 * max(0, len(cur) - (1 if any(c in 'DXWM' for c in cur) else 3)) if state['forced'] else 0) + 16 * cur.count('M')
        tline.append(sim['t'])
    if report is not None:
        report["stalls"] = stalls; report["tline"] = tline; report["simstall"] = sim['stall']
        report["over"] = over; report["stat"] = stat
        iss = {}; wt = {}
        for u in U:
            for x in u.ins:
                if x.tag is not None and x.kind == "vmem": iss[x.tag] = u.gap
                if x.kind == "waitvm":
                    for tg in x.tags: wt.setdefault(tg, u.gap)
        seq = []; g = -1; lastof = {}; sh = []
        for x in out:
            if x.kind == "mfma" and x in mfset: g += 1
            if x.kind == "vmem":
                seq.append((g, x))
                if x.tag is not None: lastof[x.tag] = len(seq) - 1
            if x.kind == "waitvm":
                i = max(lastof[t] for t in x.tags if t in lastof) if any(t in lastof for t in x.tags) else -1
                worst = None
                for (g0, y) in seq[:i + 1]:
                    lat = 180 if ("store" in y.op and "x4" in y.op) else (90 if "store" in y.op or (y.tag or "").startswith("tch") else (60 if y.nocount else 0))
                    if lat and g0 + lat > g and (worst is None or g0 + lat > worst[0]): worst = (g0 + lat, y.tag or y.op, g0)
                if worst: sh.append(f"{'/'.join(x.tags)}@{g}<-{worst[1]}@{worst[2]}(+{worst[0]-g})")
        report["shadow"] = sh
        report["slack"] = {t: (iss[t], wt[t], wt[t] - iss[t]) for t in iss if t in wt}
    return out
```

```python
import sys
from asmlib import *
from sched import schedule

NAME = "gated_mix__linear_attn_block__glu_gated_bilinear__prompt_kernel"
H_OFF, E_OFF, KV_OFF, FL_OFF, XB_OFF, WS_SZ = 0, 0x1400000, 0x1480000, 0x1580000, 0x1600000, 0x2900000
ST_OFF = 0x2800000
XS = [0, 32768]; WS_ = [98304, 114688, 131072]; MISC = 147456
QSB = [65536, 32768, 0]
GUB = [MISC + 4096, 98304, 110592]
HCS = [122880, 73728, 98304]
P2S = [0, 36864, 122880, 73728]
EXB = 110592
KVS = 159744
OWN = 122880
FIN = 73728
sX, sQKV, sWO, sWG, sWU, sWD, sGW, sOUT, sDBG, sWS, sGU = [f"s[{a}:{a+3}]" for a in range(4, 48, 4)]
sXB = sGW
W, MT, N, Q, M2, NT, J, FLAG = 48, 49, 50, 51, 52, 53, 54, 55
T0, T1, T2, T3 = 56, 57, 58, 59
MX, MHC, MQKV, MW1K, MP2 = 60, 61, 62, 63, 64
SOFX = 64
RA, RB, RM, RO = 72, 73, 74, 75
SPIN, NL1K = 76, 77
MASK2 = "s[78:79]"; MASKQ0 = "s[80:81]"
REX, U0, U1, NONCE = 82, 83, 84, 85
TH, TK = 90, 91
NQ = 0
KP = [86, 87, 3, 100, 101, 97, 88, 89, 1]
WO4 = [65, 66, 67, 68]; HO4 = [69, 70, 71, 4]; RB2 = [5, 6]; RM2 = [7, 8]; RO2 = [9, 10]; PH2 = [11, 72]
L = 0
aXd = [1, 2]; aWd = 3; aWtr = [4, 5, 6, 7]; aXr = [8, 9]; aGr = 10; aH = 11
aQKVd, aGUd, aQKVtr, aCtr, aGUtr = 12, 13, 14, 15, 16
aHCd = 17; aHCtr = [18, 19]; vF, vP, vT, vT2 = 20, 21, 22, 23
aWd2, vXb, aQ2, aQ3 = 20, 21, 22, 23
aHCd2 = 63
aWD = list(range(1, 10)); aP2tr = 10; aP2H = 12; aKV = 13; aMisc = 14; aL16 = 15; aE = 16
WF = [24, 32, 40]; GATE = 48; vFV = 51; vF2 = 55; vP2 = 59
R = [64 + 16 * i for i in range(10)]
def vr(a, n=4): return f"v[{a}:{a+n-1}]"
def xreg(p, t, i):
    f = 4 * t + i
    return f"a[{32*p+4*f}:{32*p+4*f+3}]" if p < 8 else vr(224 + 4 * f)
MF = "v_mfma_f32_16x16x32_bf16"
LOG2E, EPS = "0x3fb8aa3b", "0x358637bd"
def Is(s): return [I(x) for x in s.strip().split("\n")]
def costed(i, c, urgent=False): i.cost = c; i.urgent = urgent; return i
def fence(w): w.fence = True; return w

class Gen:
    def __init__(self, opt):
        self.opt = opt; self.tl = Timeline(); self.slow = []; self.nl = 0; self.pro = []; self.stamps = []; self.bstamps = []
        self.cST = opt.get("cst", 16)
        self.c = dict(x=4.8, q=11.0, g=18.0, hc=9.6, wd=opt.get("cwd", 6.0), h=opt.get("ch", 4.4))
        sc = opt.get("csc", 1.0)
        for k in ("q", "g", "hc"): self.c[k] *= sc
    def lab(self, s): self.nl += 1; return f"L_{s}_{self.nl}"
    def dma(self, vaddr, srd, soff, m0base, m0imm, tag, cost, imm=0, pre=[]):
        m0t = f"s_add_u32 m0, s{m0base}, {m0imm}"
        offs = f" offset:{imm}" if imm else ""
        nt = " nt" if self.opt.get("ntx" if srd == sX else ("ntq" if srd == sQKV else ("ntd" if srd in (sWD, sWO) else "ntw")), 0) else ""
        d = costed(I(f"buffer_load_dwordx4 v{vaddr}, {srd}, {soff} offen{offs}{nt} lds", tag=tag), cost)
        d.m0exp = m0t; d.prep = [I(m0t)] + list(pre)
        return [d]
    def flat(self, bundles):
        o = []; last = {}
        for b in bundles:
            for x in b:
                for p in getattr(x, "prep", []):
                    r = tuple(p.writes)
                    if last.get(r) != p.text: o.append(I(p.text)); last[r] = p.text
                o.append(x)
        return o
    def w0only(self, body):
        lb = self.lab("w0")
        for x in body: x.skip = True
        return Atom([I(f"s_cmp_lg_u32 s{W}, 0"), I(f"s_cbranch_scc1 {lb}")] + body + [I(f"{lb}:")])
    def flag_publish(self, val):
        return self.w0only([I(f"v_mov_b32 v{vFV}, s{NONCE}"), I(f"v_add_u32 v{vFV}, {val}, v{vFV}"), I("s_mov_b64 exec, 1"),
                            costed(I(f"buffer_store_dword v{vFV}, off, {sWS}, s{FLAG} sc1", nocount=True), 0, True), I("s_mov_b64 exec, -1")])
    def poll_ld(self, dst, addr, srd, tag=None):
        return costed(I(f"buffer_load_dword v{dst}, v{addr}, {srd}, 0 offen sc1", nocount=True, tag=tag), 0, True)
    def poll_issue(self, *specs):
        return self.w0only([self.poll_ld(d, a, s, t) for t, d, a, s in specs])
    def poll_check(self, *specs):
        body = []
        for tag, d, a, s, cmp, need in specs:
            ok = self.lab("ok"); sl = self.lab("slow"); lp = self.lab("lp")
            if cmp == "nonce": test = [I(f"v_readfirstlane_b32 s{NONCE}, v{d}"), I("s_nop 0"), I(f"s_cmp_lg_u32 s{NONCE}, 0")]
            else: test = [I(f"v_subrev_u32 v{d}, s{NONCE}, v{d}"), I(f"v_add_u32 v{d}, {-need}, v{d}"), I(f"v_cmp_gt_u32 vcc, {8-need}, v{d}"), I("s_cmp_eq_u64 vcc, -1")]
            self.slow += [I(f"{sl}:"), I(f"s_mov_b32 s{SPIN}, 0x40000"), I(f"{lp}:"), I("s_sleep 1"), self.poll_ld(d, a, s), I("s_waitcnt vmcnt(0)"),
                          ] + [I(t.text) for t in test] + [I(f"s_cbranch_scc1 {ok}"),
                          I(f"s_sub_u32 s{SPIN}, s{SPIN}, 1"), I(f"s_cmp_lg_u32 s{SPIN}, 0"), I(f"s_cbranch_scc1 {lp}"), I(f"s_branch {ok}")]
            body += [waitvm(tag)] + test + [I(f"s_cbranch_scc0 {sl}"), I(f"{ok}:")]
        return self.w0only(body)
    def nonce_loads(self):
        lb = self.lab("n0")
        body = Is(f"v_lshlrev_b32 v{R[8]+4}, 7, v{L}\ns_mov_b32 s{U0}, {FL_OFF}") + \
               [x for k in range(4) for x in ([I(f"s_add_u32 s{U0}, s{U0}, 8192")] if k else []) + [costed(I(f"buffer_load_dword v{R[8]+8+k}, v{R[8]+4}, {sWS}, s{U0} offen sc1", nocount=True, tag="nl"), 0, True)]]
        for x in body: x.skip = True
        return Atom([I(f"s_or_b32 s{U0}, s2, s{W}"), I(f"s_cbranch_scc1 {lb}")] + body + [I(f"{lb}:")])
    def pick_nonce(self):
        lb = self.lab("n1"); lp = self.lab("n2"); r = R[8] + 8
        body = [waitvm("nl")] + [I(f"v_lshrrev_b32 v{r+k}, 3, v{r+k}") for k in range(4)] + Is(f"s_mov_b32 s{U0}, 0\n{lp}:\ns_add_u32 s{U0}, s{U0}, 1")
        body += Is(f"v_cmp_eq_u32 vcc, s{U0}, v{r}\nv_cmp_eq_u32 s[58:59], s{U0}, v{r+1}\ns_or_b64 vcc, vcc, s[58:59]\nv_cmp_eq_u32 s[58:59], s{U0}, v{r+2}\ns_or_b64 vcc, vcc, s[58:59]\n"
                   f"v_cmp_eq_u32 s[58:59], s{U0}, v{r+3}\ns_or_b64 vcc, vcc, s[58:59]\ns_cbranch_scc1 {lp}\ns_lshl_b32 s{U0}, s{U0}, 3\nv_mov_b32 v{r}, s{U0}\ns_mov_b64 exec, 1")
        body += [costed(I(f"buffer_store_dword v{r}, off, {sDBG}, 0 sc1", nocount=True), 0, True), I("s_mov_b64 exec, -1")]
        for x in body: x.skip = True
        return Atom([I(f"s_or_b32 s{U0}, s2, s{W}"), I(f"s_cbranch_scc1 {lb}")] + body + [I(f"{lb}:")])
    def touch(self, dst, addr, srd):
        lanes = 11 if srd == sWO else 41
        nt = " nt" if self.opt.get("ntt") else ""
        t = costed(I(f"buffer_load_dword v{dst}, v{addr}, {srd}, 0 offen{nt}", tag="tch"), self.opt.get("ctch", 40) * lanes / 41); t.lat = 1300
        return t
    def stamp(self, name, early=False):
        if not self.opt.get("stamps"): return []
        if self.opt.get("stamps") == 2 and not getattr(self, "numbering", name in ("entry", "kernarg", "issued")):
            ph = I("s_nop 0"); ph.stampname = (name, early); ph.urgent = True
            return Atom([ph, I("s_nop 0")])
        k = len(self.stamps); self.stamps.append(name)
        cur = 92 + 2 * (k % 2); prv = 92 + 2 * ((k + 1) % 2); tv = 192 if early else vFV
        o = [I(f"s_memtime s[{cur}:{cur+1}]")]
        if k: o += [I(f"v_mov_b32 v{tv}, s{prv}"), costed(I(f"buffer_store_dword v{tv}, off, {sWS}, s96 offset:{4*(k-1)}", nocount=True), 0, True)]
        return Atom(o)
    def phi_block(self, regs, tmps):
        o = []
        for k in range(0, len(regs), len(tmps)):
            rs = list(zip(regs[k:k + len(tmps)], tmps))
            o += [I(f"v_mul_f32 v{t}, {LOG2E}, v{r}") for r, t in rs]
            o += [I(f"v_exp_f32_e64 v{t}, v{t} clamp") for r, t in rs]
            o += [I(f"v_max_f32 v{r}, {EPS}, v{r}") for r, t in rs]
            o += [I(f"v_add_f32 v{r}, v{t}, v{r}") for r, t in rs]
        return o
    def epi_pair(self, g, u, dst, half):
        o = []
        for i in range(4):
            for r in range(4): o.append(I(f"v_mul_f32 v{g+4*i+r}, v{g+4*i+r}, v{u+4*i+r}"))
            for r in range(4): o.append(I(f"v_mul_f32 v{g+4*i+r}, v{g+4*i+r}, v{GATE+4*i+2}"))
            for h in range(2): o.append(I(f"v_cvt_pk_bf16_f32 v{dst+4*i+2*half+h}, v{g+4*i+2*h}, v{g+4*i+2*h+1}"))
        return o
    def hstore(self, data, kk, tag, chunk0=False):
        o = []
        for i in range(4):
            c = H_OFF + i * 40960 + kk * 1024
            d = costed(I(f"buffer_store_dwordx4 {vr(data+4*i)}, v{aH}, {sWS}, s{T3} offen sc1{' nt' if self.opt.get('nts') else ''}", tag=tag), self.cST)
            d.prep = [I(f"s_add_u32 s{T3}, s{NL1K}, {c}") if chunk0 else I(f"s_mov_b32 s{T3}, {c}")]
            d.bias = self.opt.get("sbias_" + tag, self.opt.get("sbias", -120))
            o.append([d])
        return o
    def x_batch(self, p):
        o = []
        for b in range(8):
            o.append(self.dma(aXd[b & 1], sX, f"s{SOFX+b}" if b else "0", MX, XS[p % 2] + b * 1024, f"x{p}", self.c["x"]))
        if p < 8: o.append([I(f"v_lshl_add_u32 v{aXd[0]}, s{KP[p+1]}, 7, v{vXb}"), I(f"v_xor_b32 v{aXd[1]}, 64, v{aXd[0]}")])
        return o
    def wA_batch(self, p):
        o = []
        for h in range(2):
            for m, srd in ((0, sWG), (1, sWU)):
                b = [I(f"s_mul_i32 s{T0}, s{KP[p]}, {64*9216}")]
                o.append(self.dma(aWd2 if h else aWd, srd, f"s{T0}", MW1K, WS_[p % 3] + m * 8192 + h * 4096, f"w{p}", self.c["x"], pre=b))
        return o
    def x_reads(self, p):
        o = []
        for t in range(2):
            for i in range(4):
                o.append([I(f"ds_read_b128 {xreg(p,t,i)}, v{aXr[t]} offset:{i*2048}", tag=f"xr{p}")])
        d = XS[(p + 1) % 2] - XS[p % 2]
        op = f"v_add_u32 v%d, {d}, v%d" if d > 0 else f"v_subrev_u32 v%d, {-d}, v%d"
        o.append([I(op % (aXr[0], aXr[0])), I(op % (aXr[1], aXr[1]))])
        return o
    def qkv_batch(self, ss):
        o = []
        for kk in range(3):
            kp = 3 * ss + kk; base = QSB[ss] + 9216 * kk
            pre = [I(f"s_mul_i32 s{T1}, s{KP[kp]}, {64*3456}")]
            o.append(self.dma(aQKVd, sQKV, f"s{T1}", MW1K, base, f"qs{ss}", self.c["q"], pre=pre))
            o.append(self.dma(aQ2, sQKV, f"s{T1}", MW1K, base + 4096, f"qs{ss}", self.c["q"], pre=pre))
            d = self.dma(aQ3, sQKV, f"s{T1}", MQKV, base + 8192, f"qs{ss}", self.c["q"] / 4, pre=pre)[0]; d.prep_outer = d.prep
            o.append(Atom([I("s_mov_b64 exec, 0xffff"), d, I("s_mov_b64 exec, -1")]))
            o.append(self.dma(aGUd, sGU, f"s{T2}", MW1K, GUB[ss] + kk * 4096, f"qs{ss}", self.c["g"], pre=[I(f"s_mul_i32 s{T2}, s{KP[kp]}, {64*9216}")]))
        if ss == 0:
            for b in o:
                for x in b: x.bias = self.opt.get("q0bias", 0)
        return o
    def hc_batch(self, hs):
        o = []
        for k6 in range(6):
            ks = 6 * (hs % 3) + k6
            c = (hs // 3) * 64
            o.append(self.dma(aHCd2 if ks & 1 else aHCd, sGU, f"s{T2}", MHC, HCS[hs % 3] + k6 * 4096 - c, f"hc{hs}", self.c["hc"] * (self.opt.get("hc0m", 1) if hs == 0 else 1), imm=c, pre=[I(f"s_mul_i32 s{T2}, s{KP[ks//2]}, {64*9216}")]))
        return o
    def wd_batch(self, st):
        o = []
        if st < 4: p0 = f"s_mov_b32 s{T0}, s{WO4[st]}"
        elif st < 6: p0 = f"s_add_u32 s{T0}, s{RB2[st&1]}, {64*1152}"
        elif st < 8: p0 = f"s_add_u32 s{T0}, s{RM2[st&1]}, {512*1152}"
        else: p0 = f"s_add_u32 s{T0}, s{RB2[st&1]}, {96*1152}"
        p1 = f"s_mov_b32 s{T1}, s{RO2[st&1]}"
        for j in range(9):
            m0 = P2S[st % 4] + (j // 4) * 4096
            imm = (j % 4) * 1024; tag = f"wd{st}"; c = self.c["wd"]
            if 6 <= st < 8 and j == 4:
                a = self.dma(aWD[j], sWD, f"s{T0}", MP2, m0, tag, c, imm, pre=[I(p0)])[0]; b = self.dma(aWD[j], sWO, f"s{T1}", MP2, m0, tag, c, imm, pre=[I(p1)])[0]
                a.prep_outer = a.prep + b.prep[1:]
                o.append(Atom([I("s_mov_b32 exec_hi, 0"), a] + Is("s_mov_b32 exec_hi, -1\ns_mov_b32 exec_lo, 0") + [b, I("s_mov_b32 exec_lo, -1")]))
            elif 6 <= st < 8 and j > 4: o.append(self.dma(aWD[j], sWO, f"s{T1}", MP2, m0, tag, c, imm, pre=[I(p1)]))
            else: o.append(self.dma(aWD[j], sWD, f"s{T0}", MP2, m0, tag, c, imm, pre=[I(p0)]))
        return o
    def hreg(self, st, k, i): b = 32 * (st % 8) + 16 * i + 4 * k; return f"a[{b}:{b+3}]"
    def h_batch(self, st):
        o = []
        for i in range(2):
            for k in range(4):
                o.append([costed(I(f"buffer_load_dwordx4 {self.hreg(st,k,i)}, v{aP2H}, {sWS}, s{TH} offen offset:{k*1024} sc1{' nt' if self.opt.get('nth') else ''}", tag=f"h{st}"), self.opt.get("chm", 8) if st in (0, 4, 6, 8) else self.c["h"])])
                if st in (0, 4, 6, 8): o[-1][0].lat = 800
                o[-1][0].prep = [I(f"s_add_u32 s{TH}, s{HO4[st] if st < 4 else PH2[st&1]}, {H_OFF + (0 if st < 4 else (st & ~1)*4096) + i*40960}")]
        return o

    def prologue(self):
        P = self.pro
        A = lambda s: P.extend(Is(s))
        A(f"s_cmp_ge_u32 s2, 256\ns_cbranch_scc1 L_end")
        P.extend(self.stamp("entry", True))
        if self.opt.get("stamps"): A("s_memrealtime s[98:99]")
        A("s_load_dwordx16 s[64:79], s[0:1], 0\ns_load_dwordx4 s[80:83], s[0:1], 64\ns_load_dwordx2 s[84:85], s[0:1], 80")
        A(f"v_lshrrev_b32 v1, 6, v0\nv_and_b32 v{L}, 63, v0\nv_readfirstlane_b32 s{W}, v1")
        if self.opt.get("scramble"): A("s_lshr_b32 s3, s2, 5\ns_and_b32 s2, s2, 31\ns_lshl_b32 s2, s2, 3\ns_or_b32 s2, s2, s3")
        A(f"s_lshr_b32 s{J}, s2, 3\ns_and_b32 s{T0}, s2, 1\ns_bfe_u32 s{Q}, s2, 0x20001")
        A(f"s_lshl_b32 s{MT}, s{T0}, 2\ns_and_b32 s{NT}, s{J}, 3\ns_add_u32 s{MT}, s{MT}, s{NT}")
        A(f"s_lshr_b32 s{T1}, s{J}, 2\ns_lshl_b32 s{N}, s{Q}, 3\ns_add_u32 s{N}, s{N}, s{T1}")
        if self.opt.get("map1"):
            A(f"s_and_b32 s{MT}, s{J}, 7\ns_and_b32 s{N}, s2, 7\ns_lshl_b32 s{N}, s{N}, 2\ns_lshr_b32 s{T2}, s{J}, 3\ns_add_u32 s{N}, s{N}, s{T2}")
        A(f"s_lshl_b32 s{M2}, s{T0}, 3\ns_add_u32 s{M2}, s{M2}, s{T1}")
        A(f"s_lshl_b32 s{MX}, s{W}, 13\ns_lshl_b32 s{MW1K}, s{W}, 10\ns_lshl_b32 s{MQKV}, s{W}, 8")
        A(f"s_and_b32 s{T0}, s{W}, 1\ns_lshl_b32 s{T0}, s{T0}, 11\ns_lshr_b32 s{T2}, s{W}, 1\ns_lshl_b32 s{T2}, s{T2}, 10\ns_add_u32 s{MHC}, s{T0}, s{T2}")
        A(f"s_lshr_b32 s{T0}, s{N}, 2\ns_mul_i32 s{T0}, s{T0}, 1152\ns_and_b32 s{T2}, s{N}, 3\ns_lshl_b32 s90, s{T2}, 8\ns_add_u32 s90, s90, s{T0}")
        A(f"s_lshl_b32 s91, s{T2}, 5\ns_add_u32 s91, s91, s{T0}\ns_add_u32 s91, s91, 1024")
        A(f"s_and_b32 s{T0}, s{N}, 7\ns_and_b32 s{T2}, s{MT}, 3\ns_lshl_b32 s{T2}, s{T2}, 1\ns_add_u32 s{T0}, s{T0}, s{T2}\ns_lshr_b32 s{T2}, s{MT}, 2\ns_add_u32 s{T0}, s{T0}, s{T2}")
        rm = self.opt.get("rot", 9)
        if rm == 3: A(f"s_and_b32 s{T0}, s{N}, 7\ns_and_b32 s{T2}, s{MT}, 3\ns_add_u32 s{T0}, s{T0}, s{T2}\ns_mul_i32 s{T2}, s{T0}, 43\ns_lshr_b32 s{T2}, s{T2}, 7\ns_mul_i32 s{T2}, s{T2}, 3\ns_sub_u32 s{T0}, s{T0}, s{T2}\ns_mul_i32 s{T0}, s{T0}, 3")
        if rm == 0: A(f"s_mov_b32 s{T0}, 0")
        A(f"s_cmp_ge_u32 s{T0}, 9\ns_cselect_b32 s{T2}, 9, 0\ns_sub_u32 s{KP[0]}, s{T0}, s{T2}")
        for p in range(1, 8): A(f"s_add_u32 s{KP[p]}, s{KP[p-1]}, 1\ns_cmp_eq_u32 s{KP[p]}, 9\ns_cselect_b32 s{KP[p]}, 0, s{KP[p]}")
        A(f"s_lshl_b32 s{T3}, s{KP[0]}, 7")
        A(f"v_lshrrev_b32 v44, 3, v{L}\nv_lshrrev_b32 v45, 4, v{L}\nv_bfe_u32 v46, v{L}, 2, 2\nv_and_b32 v47, 3, v{L}")
        A(f"s_lshl_b32 s{T0}, s{MT}, 8\ns_lshl_b32 s{T2}, s{W}, 6\ns_add_u32 s{T0}, s{T0}, s{T2}")
        A(f"v_add_u32 v24, s{T0}, v44\nv_mul_u32_u24 v24, 1152, v24\nv_and_b32 v25, 7, v{L}\nv_xor_b32 v26, v25, v45\nv_lshl_add_u32 v{vXb}, v26, 4, v24\nv_add_u32 v{aXd[0]}, s{T3}, v{vXb}\nv_xor_b32 v{aXd[1]}, 64, v{aXd[0]}")
        A(f"s_lshl_b32 s{T0}, s{W}, 3\nv_add_u32 v24, s{T0}, v44\nv_mul_u32_u24 v24, 9216, v24\nv_add_u32 v24, s90, v24")
        A(f"s_and_b32 s{T0}, s{W}, 1\ns_lshl_b32 s{T0}, s{T0}, 1\nv_and_b32 v26, 1, v45\nv_or_b32 v26, s{T0}, v26\nv_lshrrev_b32 v27, 1, v25\nv_xor_b32 v26, v26, v27")
        A(f"v_lshl_add_u32 v24, v26, 5, v24\nv_and_b32 v28, 1, v{L}\nv_lshl_add_u32 v{aWd}, v28, 4, v24\nv_lshlrev_b32 v24, 4, v{L}")
        A(f"v_add_u32 v24, s{MW1K}, v24\nv_add_u32 v25, s{T3}, v24\nv_subrev_u32 v26, 1152, v25\nv_min_u32 v25, v25, v26\nv_cmp_gt_u32 vcc, 1152, v24\ns_nop 1\nv_cndmask_b32 v24, v24, v25, vcc")
        P.append(I("s_waitcnt lgkmcnt(0)"))
        def srd(dst, lo, size):
            d = int(dst[2:dst.index(":")])
            return f"s_mov_b32 s{d}, s{lo}\ns_and_b32 s{d+1}, s{lo+1}, 0xffff\ns_mov_b32 s{d+2}, {size}\ns_mov_b32 s{d+3}, 0x20000"
        A(f"v_add_u32 v{aWd2}, {32*9216}, v{aWd}")
        A(srd(sWG, 72, 5308416)); A(srd(sWU, 74, 5308416)); A(srd(sX, 64, 2359296))
        A(f"s_add_u32 s{KP[8]}, s{KP[7]}, 1\ns_cmp_eq_u32 s{KP[8]}, 9\ns_cselect_b32 s{KP[8]}, 0, s{KP[8]}")
        P.extend(self.flat(self.wA_batch(0)))
        A(srd(sGW, 78, 1152)); A(srd(sQKV, 66, 1990656)); A(srd(sWD, 76, 5308416)); A(srd(sOUT, 80, 2359296)); A(srd(sDBG, 82, 256)); A(srd(sWS, 84, WS_SZ))
        A(f"s_sub_u32 s12, s68, 18432\ns_subb_u32 s13, s69, 0\ns_and_b32 s13, s13, 0xffff\ns_mov_b32 s14, {663552+18432}\ns_mov_b32 s15, 0x20000")
        for b in range(1, 8): A(f"s_mov_b32 s{SOFX+b}, {9216*b}")
        A(f"s_lshl_b32 s{FLAG}, s{MT}, 5\ns_add_u32 s{FLAG}, s{FLAG}, s{N}\ns_lshl_b32 s{FLAG}, s{FLAG}, 7\ns_add_u32 s{FLAG}, s{FLAG}, {FL_OFF}")
        if self.opt.get("stamps"): A(f"s_lshl_b32 s96, s2, 2\ns_add_u32 s96, s96, s{W}\ns_lshl_b32 s96, s96, 10\ns_add_u32 s96, s96, {ST_OFF}")
        P.extend(self.stamp("kernarg", True))
        C = []
        B = lambda s: C.extend(Is(s))
        UA, UB = U0, U1
        B(f"s_bitcmp1_b32 s{W}, 0\ns_cselect_b32 s44, s20, s16\ns_cselect_b32 s45, s21, s17\ns_mov_b32 s46, 5308416\ns_mov_b32 s47, 0x20000")
        B(f"v_lshl_add_u32 v29, v45, 3, v46\nv_lshlrev_b32 v30, 7, v29\nv_lshl_add_u32 v30, v47, 3, v30\nv_add_u32 v30, {WS_[0]}, v30")
        B(f"v_lshrrev_b32 v31, 1, v46\nv_and_b32 v32, 1, v45\nv_lshl_or_b32 v31, v32, 1, v31")
        for k in range(4): B(f"v_xor_b32 v33, {k}, v31\nv_lshl_add_u32 v{aWtr[k]}, v33, 5, v30")
        B(f"v_and_b32 v33, 15, v{L}\nv_lshrrev_b32 v34, 1, v33\nv_xor_b32 v34, v34, v45\nv_lshlrev_b32 v35, 7, v33\nv_add_u32 v35, s{MX}, v35")
        B(f"v_lshl_add_u32 v{aXr[0]}, v34, 4, v35\nv_xor_b32 v{aXr[1]}, 64, v{aXr[0]}")
        B(f"v_lshlrev_b32 v{aGr}, 4, v45\nv_add_u32 v{aGr}, {MISC}, v{aGr}")
        B(f"s_lshl_b32 s{UA}, s{Q}, 7\ns_lshl_b32 s{UB}, s{MT}, 4\ns_add_u32 s{UA}, s{UA}, s{UB}\ns_lshl_b32 s{UB}, s{W}, 2\ns_add_u32 s{UA}, s{UA}, s{UB}")
        B(f"s_mul_i32 s{UA}, s{UA}, 40960\ns_and_b32 s{NL1K}, s{N}, 7\ns_lshl_b32 s{NL1K}, s{NL1K}, 10\ns_add_u32 s{UA}, s{UA}, s{NL1K}\nv_lshl_add_u32 v{aH}, v{L}, 4, s{UA}")
        B(f"s_xor_b32 s{NQ}, s{N}, {self.opt.get('qx', 0)}\ns_mul_i32 s{UB}, s{N}, 36\ns_mul_i32 s{UA}, s{NQ}, 36\nv_mov_b32 v38, s{UA}\nv_mov_b32 v39, s{UB}")
        for dst, sh, add in ((aQKVd, 6, 0), (aQ2, 6, 256), (aQ3, 4, 512)):
            B(f"s_lshl_b32 s{UA}, s{W}, {sh}\ns_add_u32 s{UA}, s{UA}, {add}\nv_add_u32 v33, s{UA}, v{L}\nv_mul_u32_u24 v34, 7282, v33\nv_lshrrev_b32 v34, 16, v34\nv_mul_u32_u24 v35, 9, v34\nv_sub_u32 v35, v33, v35")
            B(f"v_mul_u32_u24 v36, 21846, v35\nv_lshrrev_b32 v36, 16, v36\nv_cmp_gt_u32 vcc, 3, v35\nv_mul_u32_u24 v37, 3, v36\nv_sub_u32 v37, v35, v37\nv_cndmask_b32 v35, v39, v38, vcc")
            B(f"v_mul_u32_u24 v34, 3456, v34\nv_mul_u32_u24 v36, 1152, v36\nv_lshl_add_u32 v37, v37, 4, v35\nv_add3_u32 v{dst}, v34, v36, v37")
        B(f"v_lshrrev_b32 v34, 5, v{L}\nv_bfe_u32 v35, v{L}, 3, 2\nv_bfe_u32 v36, v{L}, 1, 2\nv_lshl_add_u32 v36, v34, 2, v36\nv_lshl_add_u32 v36, v35, 3, v36")
        B(f"s_lshr_b32 s{UA}, s{W}, 1\ns_lshl_b32 s{UA}, s{UA}, 5\nv_add_u32 v36, s{UA}, v36\nv_mul_u32_u24 v36, 9216, v36\nv_add_u32 v36, s91, v36\nv_and_b32 v37, 1, v{L}\nv_lshl_add_u32 v{aGUd}, v37, 4, v36")
        B(f"v_mul_u32_u24 v34, 144, v29\nv_add_u32 v34, {QSB[0]}, v34\nv_lshl_add_u32 v{aQKVtr}, v47, 3, v34")
        B(f"v_mul_u32_u24 v35, 48, v47\nv_add_u32 v35, 80, v35\nv_cmp_gt_u32 vcc, 2, v47\nv_mov_b32 v36, 32\nv_lshlrev_b32 v{aGUtr}, 3, v{L}\nv_cndmask_b32 v35, v36, v35, vcc\nv_add_u32 v{aCtr}, v34, v35")
        B(f"v_add_u32 v{aGUtr}, {GUB[0]}, v{aGUtr}")
        B(f"s_lshr_b32 s{UA}, s{W}, 1\ns_lshl_b32 s{UA}, s{UA}, 2\nv_add_u32 v34, s{UA}, v29\nv_mul_u32_u24 v34, 9216, v34\ns_add_u32 s{UA}, s90, 128\nv_add_u32 v34, s{UA}, v34")
        B(f"v_lshrrev_b32 v35, 1, v47\nv_xor_b32 v35, v35, v32\nv_lshl_add_u32 v34, v35, 5, v34\nv_lshl_add_u32 v{aHCd}, v37, 4, v34")
        B(f"v_lshrrev_b32 v34, 2, v{L}\nv_lshlrev_b32 v34, 6, v34\nv_lshl_add_u32 v34, v47, 3, v34\nv_add_u32 v34, {HCS[0]}, v34")
        B(f"v_lshl_add_u32 v{aHCtr[0]}, v32, 5, v34\nv_xor_b32 v{aHCtr[1]}, 32, v{aHCtr[0]}")
        B(f"v_cmp_eq_u32 {MASK2}, 2, v47\ns_mul_i32 s{MP2}, s{W}, 9216")
        self.p2s = []; B = lambda s: self.p2s.extend(Is(s))
        B(f"s_mul_i32 s{UA}, s{Q}, {1152*1152}\ns_lshr_b32 s{UB}, s{W}, 1\ns_mul_i32 s{UB}, s{UB}, {128*1152}\ns_add_u32 s{RA}, s{UA}, s{UB}\ns_and_b32 s{UB}, s{W}, 1\ns_mul_i32 s{UB}, s{UB}, {32*1152}\ns_add_u32 s{RA}, s{RA}, s{UB}")
        B(f"s_mul_i32 s{UB}, s{W}, {128*1152}\ns_add_u32 s{RB}, s{UA}, s{UB}\ns_mul_i32 s{UB}, s{W}, {16*1152}\ns_add_u32 s{RM}, s{UA}, s{UB}")
        B(f"s_lshl_b32 s{UA}, s{Q}, 3\ns_add_u32 s{UB}, s{UA}, s{W}\ns_xor_b32 s{RO}, s{UB}, {self.opt.get('qx', 0)}\ns_mul_i32 s{RO}, s{RO}, {18*1152}\ns_add_u32 s{UB}, s{UB}, s{W}\ns_mul_i32 s{REX}, s{UB}, {18*1152}")
        loads = self.x_batch(0) + [self.dma(24, sGW, "0", MW1K, MISC, "gw", 4.8)]
        npro = self.opt.get("npro", 2)
        self.first = [self.x_batch(1), self.wA_batch(1), self.wA_batch(2), self.x_batch(2)]
        assert npro <= 3
        for b in self.first[:npro]: loads += b
        self.first = self.first[npro:]
        k = 0; nw = max(5, -(-len(C) // len(loads)))
        for b in loads:
            P.extend(self.flat([b])); P.extend(C[k:k + nw]); k += nw
        P.extend(C[k:])
        if self.opt.get("codepf", 1):
            A(f"s_getpc_b64 s[58:59]\nL_pc:\nv_lshlrev_b32 v25, 7, v{L}\nv_add_u32 v25, s{MX}, v25")
            A(f"v_add_u32 v26, 32768, v25\nv_min_u32 v25, L_end-L_pc, v25\nv_min_u32 v26, L_end-L_pc, v26")
            P.append(I("global_load_dword v224, v25, s[58:59]", tag="pf")); P.append(I("global_load_dword v225, v26, s[58:59]", tag="pf"))
        P.extend(self.nonce_loads())
        P.extend(self.stamp("issued", True))
        P.append(waitvm("x0"))
        P.extend(sum(self.x_reads(0), []))
        P.append(waitvm("w0", "gw")); P.append(I("s_barrier"))

    def group(self, acc, buf, p, first, x_is_a, reads, tag):
        tl = self.tl; base = tl.n()
        for rd in reads:
            rd.tag = tag; rd.dl = base - 8; tl.at(base - 16, rd)
        tl.at(base - 1, waitlgkm(tag))
        for i in range(4):
            for t in range(2):
                w = vr(buf + 4 * t); x = xreg(p, t, i); d = vr(acc + 4 * i)
                c = "0" if (first and t == 0) else d
                tl.mfma(I(f"{MF} {d}, {x}, {w}, {c}" if x_is_a else f"{MF} {d}, {w}, {x}, {c}"))
        return base
    def trs(self, buf, addr, offs):
        return [I(f"ds_read_b64_tr_b16 {vr(buf+2*k,2)}, v{addr} offset:{o}") for k, o in enumerate(offs)]
    def barrier(self, pos, lg=(), vm=(), pre=None, post=None):
        tl = self.tl
        if pre and self.opt.get("stamps") != 2: tl.at(pos - 0.6, pre)
        b = ([waitlgkm(*lg)] if lg else []) + [waitvm(*vm), I("s_barrier")]
        b[-1].dl = int(pos)
        if self.opt.get("stamps") == 2: self.bstamps.append((pos, b, "/".join(vm), pre))
        if self.opt.get("stamps") == 2:
            e = pos < 650
            b = list(self.stamp("w:" + "/".join(vm) + ("+poll" if pre else ""), e)) + list(pre or []) + b + list(self.stamp("b", e))
        tl.at(pos - 0.5, Atom(b))
        if post: tl.at(pos - 0.4, post)

    def build(self):
        tl = self.tl; opt = self.opt
        self.prologue()
        G = 0
        A0 = tl.n()
        for b in self.first: tl.seq_at(A0, b)
        for p in range(9):
            s0 = tl.n()
            tl.at(s0 + 0.1, self.stamp(f"A{p}", True))
            for g in range(9):
                buf = WF[G % 3]
                if g == 0:
                    rd = [I(f"ds_read_b128 {vr(buf+4*t)}, v{aGr} offset:{p*128+t*64}") for t in range(2)]
                    self.group(GATE, buf, p, p == 0, False, rd, f"A{p}_{g}")
                else:
                    tile, mat = (g - 1) // 2, (g - 1) % 2
                    offs = [(p % 3) * 16384 + mat * 8192 + ks * 4096 + i * 512 for ks in range(2) for i in range(2)]
                    self.group(R[g - 1], buf, p, p == 0, False, self.trs(buf, aWtr[tile], offs), f"A{p}_{g}")
                G += 1
            if p < 8:
                xp = s0 + (opt.get("xrd0", 28) if p == 0 else opt.get("xrd", 28))
                tl.at(xp - 0.1, fence(waitvm(f"x{p+1}")))
                tl.spread(xp, s0 + 47.9, self.x_reads(p + 1))
                post = None
                if p == 1: post = self.pick_nonce()
                self.barrier(s0 + 64, lg=[f"xr{p+1}", f"A{p}_8"], vm=[f"w{p+1}"], post=post)
                nxt = []
                if p + 3 <= 8: nxt += self.wA_batch(p + 3)
                if p + 3 <= 8: nxt += self.x_batch(p + 3)
                if p == opt.get("q0at", 0): nxt += self.qkv_batch(0)
                if p == 6: nxt += self.qkv_batch(1)
                if p == 7: nxt += self.qkv_batch(2)
                tl.seq_at(s0 + 64, nxt)
        s8 = A0 + 8 * 72
        self.late_touch = []; tc = []
        if opt.get("touch", 1):
            early = opt.get("tearly", 0)
            t0, t1, t2, a0, a1 = (R[8] + 1, R[8] + 2, R[8] + 3, R[8] + 5, R[8] + 6) if early else (vT, vT2, vF, 52, 56)
            tc = Is(f"s_lshl_b32 s{U0}, s{J}, 2\ns_add_u32 s{U0}, s{U0}, s{W}\ns_lshl_b32 s{U1}, s{Q}, 7\ns_add_u32 s{U1}, s{U1}, s{U0}\ns_mul_i32 s{U1}, s{U1}, 81\nv_add_lshl_u32 v{a0}, v{L}, s{U1}, 7\n"
                    f"v_cmp_gt_u32 vcc, 41, v{L}\nv_mov_b32 v{t2}, 0x7fffffff\ns_mul_i32 s{U0}, s{U0}, 11\ns_mul_i32 s{U1}, s{Q}, 1296\nv_cndmask_b32 v{a0}, v{t2}, v{a0}, vcc\n"
                    f"s_add_u32 s{U0}, s{U0}, s{U1}\ns_add_u32 s{U0}, s{U0}, 144\nv_add_lshl_u32 v{a1}, v{L}, s{U0}, 7\nv_cmp_gt_u32 vcc, 11, v{L}\nv_add_u32 v{t0}, {40*128}, v{a0}\ns_nop 0\nv_cndmask_b32 v{a1}, v{t2}, v{a1}, vcc")
            self.late_touch = [[self.touch(48, a0, sWD)], [self.touch(60, a1, sWO)], [self.touch(a0, t0, sWD)]]
            if early:
                tl.at(A0 + 150, tc); tc = []
                for k, (d, a, srd) in enumerate(((t2, a0, sWD), (t1, a1, sWO), (a0, t0, sWD))):
                    t = self.touch(d, a, srd); t.urgent = True; tl.at(A0 + early + opt.get("tstep", 72) * k, t)
                self.late_touch = []
        self.tc = tc
        sg = []
        for i in range(4): sg.append(I(f"v_mul_f32 v{GATE+4*i}, 0xbfb8aa3b, v{GATE+4*i}"))
        for i in range(4): sg.append(I(f"v_exp_f32 v{GATE+4*i}, v{GATE+4*i}"))
        for i in range(4): sg.append(I(f"v_add_f32 v{GATE+4*i}, 1.0, v{GATE+4*i}"))
        for i in range(4): sg.append(I(f"v_rcp_f32 v{GATE+4*i+1}, v{GATE+4*i}"))
        for i in range(4): sg.append(I(f"v_sub_f32 v{GATE+4*i+2}, 1.0, v{GATE+4*i+1}"))
        tl.at(s8 + 11, sg)
        for j in range(4):
            tl.at(s8 + 8 * (2 * j + 3) + 2, self.epi_pair(R[2 * j], R[2 * j + 1], [R[9], R[5]][j // 2], j % 2))
        tl.seq_at(s8 + 8 * 7 + 2.5, self.hstore(R[9], 0, "hs0", True))
        B0 = tl.n()
        self.barrier(B0 - 16, vm=["qs0"])
        accB = [R[0], R[3], R[2], R[8], R[4], R[1]]
        for kp in range(9):
            ss = kp // 3
            if kp % 3 == 0: tl.at(tl.n() + 0.1, self.stamp(f"B{ss}"))
            for g in ([1, 2, 3, 0, 4, 5] if kp == 8 else range(6)):
                buf = WF[G % 3]
                if g < 4:
                    a = aQKVtr if g < 3 else aCtr
                    offs = [((kp % 3) * 64 + ks * 32 + i * 4) * 144 + (48 * g if g < 3 else 0) for ks in range(2) for i in range(2)]
                else:
                    a = aGUtr
                    offs = [(((kp % 3) * 2 + ks) * 2 + (g - 4)) * 1024 + i * 512 for ks in range(2) for i in range(2)]
                b = self.group(accB[g], buf, kp, kp == 0, g in (1, 2, 3), self.trs(buf, a, offs), f"B{kp}_{g}")
                if kp % 3 == 2 and kp < 8:
                    if g == 2: tl.at(b - 15.9, I(f"v_subrev_u32 v{aQKVtr}, {QSB[ss]-QSB[ss+1]}, v{aQKVtr}"))
                    if g == 3: tl.at(b - 15.9, I(f"v_subrev_u32 v{aCtr}, {QSB[ss]-QSB[ss+1]}, v{aCtr}"))
                    if g == 5:
                        d = GUB[ss + 1] - GUB[ss]
                        tl.at(b - 15.9, I(f"v_add_u32 v{aGUtr}, {d}, v{aGUtr}" if d > 0 else f"v_subrev_u32 v{aGUtr}, {-d}, v{aGUtr}"))
                G += 1
        tl.seq_at(B0 + 19, self.hstore(R[5], 1, "hs0", True))
        tl.at(B0 + 20, Is(f"v_mov_b32 v{vP2}, 0\nv_add_u32 v{aHCd2}, {32*9216}, v{aHCd}"))
        tl.at(B0 + 21, self.poll_issue(("p0", vF2, vP2, sDBG)))
        self.barrier(B0 + 128, lg=["B2_5"], vm=["qs1"], pre=self.poll_check(("p0", vF2, vP2, sDBG, "nonce", 0)))
        tl.seq_at(B0 + 128, self.hc_batch(0) + self.hc_batch(1))
        self.barrier(B0 + 272, vm=["qs2"])
        tl.seq_at(B0 + opt.get("tpos2", 300), self.late_touch)
        pc = [I(f"s_mul_i32 s{U0}, s{NT}, 288")]
        for j in range(9):
            pc += Is(f"v_add_u32 v{vT}, {64*j}, v{L}\nv_mul_u32_u24 v{vT2}, 3641, v{vT}\nv_lshrrev_b32 v{vT2}, 16, v{vT2}\nv_mul_u32_u24 v{aWD[j]}, 18, v{vT2}\n"
                     f"v_sub_u32 v{vT}, v{vT}, v{aWD[j]}\nv_mul_u32_u24 v{vT2}, 1152, v{vT2}\nv_lshl_add_u32 v{vT}, v{vT}, 4, v{vT2}\ns_sub_u32 s{U1}, s{U0}, {(j%4)*1024}\nv_add_u32 v{aWD[j]}, s{U1}, v{vT}")
        pc += Is(f"v_lshrrev_b32 v{vT}, 2, v{L}\nv_mul_u32_u24 v{vT}, 288, v{vT}\nv_and_b32 v{vT2}, 3, v{L}\nv_lshl_add_u32 v{aP2tr}, v{vT2}, 3, v{vT}")
        tl.at(B0 + 60, pc + self.tc)
        C0 = tl.n()
        self.barrier(C0 - 16, lg=["B8_5"], vm=["hc0"])
        Qb, Kb, Vb, Cb, G8, U8 = accB
        accC = [[R[5], R[6], R[7], R[9]], [Kb, Vb, Cb, U8]]
        for hc in range(2):
            order = [(kp, g) for kp in range(9) for g in range(4)]
            if hc == 1: order = order[:24] + [(kp, g) for h in range(2) for kp in range(6, 9) for g in (2 * h, 2 * h + 1)]
            for oi, (kp, g) in enumerate(order):
                hs = 3 * hc + kp // 3
                if oi % 12 == 0: tl.at(tl.n() + 0.1, self.stamp(f"C{hs}"))
                if True:
                    buf = WF[G % 3]; tile, mat = g // 2, g % 2
                    offs = [((kp % 3) * 2 + ks) * 4096 + mat * 2048 + i * 1024 for ks in range(2) for i in range(2)]
                    b = self.group(accC[hc][g], buf, kp, kp == 0, False, self.trs(buf, aHCtr[tile], offs), f"C{hc}_{kp}_{g}")
                    if kp % 3 == 2 and mat == 1 and hs < 5:
                        d = HCS[(hs + 1) % 3] - HCS[hs % 3]; a = aHCtr[tile]
                        tl.at(b - 15.9, I(f"v_add_u32 v{a}, {d}, v{a}" if d > 0 else f"v_subrev_u32 v{a}, {-d}, v{a}"))
                    G += 1
        CB = lambda hs: C0 + 96 * hs - 16
        C1 = C0 + 288
        dr = self.p2s + (Is(f"s_add_u32 s{U1}, s{NT}, s{M2}") if opt.get("rotd", 1) else Is(f"s_mov_b32 s{U1}, 0"))
        for st in range(4):
            dr += Is(f"s_add_u32 s{U0}, s{U1}, {st}\ns_and_b32 s{U0}, s{U0}, 3\ns_lshl_b32 s{HO4[st]}, s{U0}, 12\ns_lshr_b32 s{WO4[st]}, s{U0}, 1\ns_mul_i32 s{WO4[st]}, s{WO4[st]}, {576*1152}\n"
                     f"s_and_b32 s{U0}, s{U0}, 1\ns_mul_i32 s{U0}, s{U0}, {256*1152}\ns_add_u32 s{WO4[st]}, s{WO4[st]}, s{U0}\ns_add_u32 s{WO4[st]}, s{WO4[st]}, s{RA}")
        for e in range(2):
            dr += Is(f"s_add_u32 s{U0}, s{U1}, {e}\ns_and_b32 s{U0}, s{U0}, 1\ns_lshl_b32 s{PH2[e]}, s{U0}, 12\ns_mul_i32 s{RO2[e]}, s{U0}, {4*18*1152}\ns_add_u32 s{RO2[e]}, s{RO2[e]}, s{RO}\n"
                     f"s_mul_i32 s{U0}, s{U0}, {576*1152}\ns_add_u32 s{RB2[e]}, s{U0}, s{RB}\ns_add_u32 s{RM2[e]}, s{U0}, s{RM}")
        tl.at(C0 - 100, dr + Is('s_mov_b32 s80, 0xffff\ns_mov_b32 s81, 0'))
        tmps = [aQKVd, aE]
        k1 = Is(f"s_lshl_b32 s{U0}, s{W}, 12\ns_add_u32 s{U0}, s{U0}, {MISC}\nv_and_b32 v{vT}, 1, v{L}\nv_lshlrev_b32 v{vT}, 8, v{vT}\nv_and_b32 v{vT2}, 48, v{L}\n"
                f"v_add3_u32 v{vT}, v{vT}, v{vT2}, s{U0}\nv_and_b32 v{vT2}, 15, v{L}\nv_lshl_add_u32 v{vT2}, v{vT2}, 2, s{U0}")
        tl.at(C0 - 60, k1)
        tl.at(C0 - 20, Atom(Is("s_mov_b32 exec_lo, 0x03000300\ns_mov_b32 exec_hi, 0x03000300") +
                           [I(f"ds_write_b128 v{vT}, {vr(Cb+4*i)} offset:{64*i}", tag="tw") for i in range(4)] + [I("s_mov_b64 exec, -1")]))
        tl.at(C0 - 36, self.phi_block([Kb + r for r in range(16)], [aQKVd, aKV]))
        k1 = Is(f"v_lshl_add_u32 v{aMisc}, v{L}, 4, s{U0}\nv_lshlrev_b32 v{aL16}, 4, v{L}\nv_mov_b32 v{aKV}, 0x3f803f80")
        k1 += [I(f"v_cvt_pk_bf16_f32 v{Kb+r}, v{Kb+2*r}, v{Kb+2*r+1}") for r in range(8)]
        k1 += [I(f"v_cvt_pk_bf16_f32 v{Vb+r}, v{Vb+2*r}, v{Vb+2*r+1}") for r in range(8)]
        for r in range(8):
            k1 += [I(f"v_cvt_pk_bf16_f32 v{Vb+8+r}, v{Cb+2*r}, v{Cb+2*r+1}"), I(f"v_cndmask_b32_e64 v{Vb+8+r}, v{Vb+8+r}, v{aKV}, {MASK2}")]
        k1 += self.phi_block([Cb + r for r in range(16)], tmps)
        k1 += [I(f"v_cvt_pk_bf16_f32 v{Cb+r}, v{Cb+2*r}, v{Cb+2*r+1}") for r in range(8)]
        tl.at(C0 - 15, k1)
        D = [Kb + 8, Kb + 12, Cb + 8, Cb + 12]
        km = []
        for j in range(2):
            for d, (a, b) in zip(D, ((Kb, Vb), (Kb, Vb + 8), (Cb, Vb), (Cb, Vb + 8))):
                km.append(I(f"{MF} {vr(d)}, {vr(a+4*j)}, {vr(b+4*j)}, {'0' if j == 0 else vr(d)}"))
        kvp = opt.get("kvp", 110)
        tl.at(C0 + kvp, km)
        QX = Vb + 8
        tl.at(C0 + kvp + 9, [I(f"ds_read2_b32 {vr(QX+2*i,2)}, v{vT2} offset0:{16*i} offset1:{64+16*i}", tag="tr") for i in range(4)])
        tl.at(C0 + kvp + 10, [I(f"ds_write_b128 v{aMisc}, {vr(D[t])} offset:{1024*t}", tag="kw") for t in range(4)])
        tl.seq_at(CB(0), self.hc_batch(2))
        self.barrier(CB(1), lg=["C0_2_3"], vm=["hc1", "hs0"], post=self.flag_publish(1))
        tl.seq_at(CB(1), self.hc_batch(3) + self.wd_batch(0) + self.wd_batch(1))
        self.barrier(CB(2), lg=["C0_5_3"], vm=["hc2"])
        KB = C0 + kvp + 24
        b = Atom([waitlgkm("kw"), I("s_barrier")]); b[-1].dl = KB; tl.at(KB - 0.5, b)
        tl.at(KB - 12, Is(f"s_add_u32 s{U0}, s{MW1K}, {MISC}\nv_add_u32 v{vT}, s{U0}, v{aL16}"))
        tl.at(KB, [I(f"ds_read_b128 {vr(Kb+4*a)}, v{vT} offset:{4096*a}", tag="kr") for a in range(4)])
        red = [waitlgkm("kr")]
        for a in range(1, 4): red += [I(f"v_add_f32 v{Kb+r}, v{Kb+r}, v{Kb+4*a+r}") for r in range(4)]
        tl.at(KB - 11, Is(f"s_lshl_b32 s{TK}, s{N}, 3\ns_add_u32 s{TK}, s{TK}, s{MT}\ns_lshl_b32 s{TK}, s{TK}, 12\ns_add_u32 s{TK}, s{TK}, s{MW1K}\ns_add_u32 s{TK}, s{TK}, {KV_OFF}"))
        red += [costed(I(f"buffer_store_dwordx4 {vr(Kb)}, v{aL16}, {sWS}, s{TK} offen sc1", tag="kvs"), self.cST, True)]
        for x in red: x.dl = KB + 26
        tl.at(KB + 12, red)
        tl.seq_at(CB(2), self.hc_batch(4))
        q1 = self.epi_pair(G8, U8, G8, 0) + [waitlgkm("tr")] + self.phi_block([Qb + r for r in range(16)], tmps) + self.phi_block([QX + r for r in range(8)], tmps)
        for i in range(4):
            q1 += Is(f"v_cvt_pk_bf16_f32 v{Qb+4*i}, v{Qb+4*i}, v{Qb+4*i+1}\nv_cvt_pk_bf16_f32 v{Qb+4*i+1}, v{Qb+4*i+2}, v{Qb+4*i+3}\n"
                     f"v_cvt_pk_bf16_f32 v{Qb+4*i+2}, v{QX+2*i}, v{QX+2*i+1}\nv_cndmask_b32_e64 v{Qb+4*i+2}, 0, v{Qb+4*i+2}, {MASKQ0}\nv_mov_b32 v{Qb+4*i+3}, 0")
        tl.at(C0 + kvp + 11, q1)
        hpoll = Is(f"s_lshr_b32 s{U0}, s{M2}, 1\ns_lshl_b32 s{U0}, s{U0}, 5\ns_lshl_b32 s{U1}, s{Q}, 3\ns_add_u32 s{U0}, s{U0}, s{U1}\ns_lshl_b32 s{U0}, s{U0}, 7\ns_add_u32 s{U0}, s{U0}, {FL_OFF}\n"
                   f"v_and_b32 v{vP}, 7, v{L}\nv_lshl_add_u32 v{vP}, v{vP}, 7, s{U0}")
        tl.at(CB(2) + 30, hpoll)
        tl.at(CB(2) + 50, self.poll_issue(("p1", vF, vP, sWS)))
        self.barrier(CB(3), lg=["C0_8_3"], vm=["hc3", "kvs"], pre=self.poll_check(("p1", vF, vP, sWS, "le", 1)), post=self.flag_publish(2))
        tl.seq_at(CB(3), self.hc_batch(5))
        tl.at(C1 + 1, self.epi_pair(R[5], R[6], R[6], 0) + self.epi_pair(R[7], R[9], R[6], 1))
        tl.at(C1 + 0.5, Is(f"s_lshl_b32 s{U0}, s{Q}, 7\ns_lshl_b32 s{U1}, s{M2}, 3\ns_add_u32 s{U0}, s{U0}, s{U1}\ns_lshl_b32 s{U1}, s{W}, 1\ns_add_u32 s{U0}, s{U0}, s{U1}\n"
                           f"s_mul_i32 s{U0}, s{U0}, 40960\nv_add_u32 v{aP2H}, s{U0}, v{aL16}\n"
                           f"s_lshl_b32 s{U0}, s{NQ}, 7\ns_add_u32 s{U0}, s{U0}, {FL_OFF}\nv_and_b32 v{vP2}, 7, v{L}\nv_lshl_add_u32 v{vP2}, v{vP2}, 12, s{U0}"))
        tl.seq_at(CB(4) + opt.get("hs1at", 36), self.hstore(R[6], 16, "hs1"))
        tl.at(CB(4) - opt.get("p2lead", 45), self.poll_issue(("p2", vF2, vP2, sWS)))
        self.barrier(CB(4), lg=["C1_2_3"], vm=["hc4"], pre=self.poll_check(("p2", vF2, vP2, sWS, "le", 2)))
        kvl = []
        tl.at(CB(4) - 30, Is(f"s_lshl_b32 s{TK}, s{NQ}, 15\ns_add_u32 s{TK}, s{TK}, s{MW1K}"))
        for m in range(8):
            dst = (R[5] if m < 4 else R[7]) + 4 * (m % 4)
            d = costed(I(f"buffer_load_dwordx4 {vr(dst)}, v{aL16}, {sWS}, s{T3} offen sc1", tag="kvl"), 8); d.lat = 800
            d.prep = [I(f"s_add_u32 s{T3}, s{TK}, {KV_OFF + 4096*m}")]; kvl.append([d])
        tl.seq_at(CB(4), kvl + self.wd_batch(2) + self.h_batch(0) + self.h_batch(1))
        sm = [waitvm("kvl")]
        for m in range(1, 8):
            src = (R[5] if m < 4 else R[7]) + 4 * (m % 4)
            sm += [I(f"v_add_f32 v{R[5]+r}, v{R[5]+r}, v{src+r}") for r in range(4)]
        sm += [I(f"ds_write_b128 v{vT}, {vr(R[5])} offset:{KVS-MISC}", tag="sw")]
        tl.at(CB(5) - 24, sm)
        self.barrier(CB(5), lg=["C1_5_3", "sw"], vm=["hc5"])
        tl.at(CB(5) - 8, I(f"v_add_u32 v{vT2}, {KVS}, v{aL16}"))
        tl.at(CB(5), [I(f"ds_read_b128 {vr(R[9]+4*t)}, v{vT2} offset:{1024*t}", tag="sr") for t in range(4)])
        nm = [waitlgkm("sr")]
        for a, (t0, t1) in enumerate(((0, 2), (1, 3))):
            for h, t in enumerate((t0, t1)):
                for z in range(2): nm.append(I(f"v_cvt_pk_bf16_f32 v{R[7]+4*a+2*h+z}, v{R[9]+4*t+2*z}, v{R[9]+4*t+2*z+1}"))
        tl.at(CB(5) + 12, nm)
        nm = []
        for i in range(4):
            nm.append(I(f"{MF} {vr(R[9]+4*i)}, {vr(R[7]+4)}, {vr(Qb+4*i)}, 0"))
            nm.append(I(f"{MF} {vr(R[5]+4*i)}, {vr(R[7])}, {vr(Qb+4*i)}, 0"))
        tl.at(CB(5) + 22, nm)
        fo = []
        for i in range(4): fo.append(I(f"v_add_f32 v{R[9]+4*i+2}, {EPS}, v{R[9]+4*i+2}"))
        for i in range(4): fo.append(I(f"v_rcp_f32 v{R[9]+4*i+2}, v{R[9]+4*i+2}"))
        for i in range(4): fo.append(I(f"v_mul_f32 v{R[9]+4*i+2}, v{R[9]+4*i+2}, v{GATE+4*i+1}"))
        for i in range(4):
            for r in range(4): fo.append(I(f"v_mul_f32 v{R[5]+4*i+r}, v{R[5]+4*i+r}, v{R[9]+4*i+2}"))
            for r in range(2): fo.append(I(f"v_mul_f32 v{R[9]+4*i+r}, v{R[9]+4*i+r}, v{R[9]+4*i+2}"))
            for h in range(2): fo.append(I(f"v_cvt_pk_bf16_f32 v{G8+4*i+2+h}, v{R[5]+4*i+2*h}, v{R[5]+4*i+2*h+1}"))
            fo.append(I(f"v_cvt_pk_bf16_f32 v{R[9]+4*i}, v{R[9]+4*i}, v{R[9]+4*i+1}"))
        tl.at(CB(5) + 34, fo)
        tl.at(CB(5) + 1, Is(f"s_lshl_b32 s{U0}, s{Q}, 7\ns_lshl_b32 s{U1}, s{MT}, 4\ns_add_u32 s{U0}, s{U0}, s{U1}\ns_lshl_b32 s{U1}, s{W}, 2\ns_add_u32 s{U0}, s{U0}, s{U1}\n"
                            f"s_lshl_b32 s{U0}, s{U0}, 9\ns_bfe_u32 s{U1}, s{NQ}, 0x20001\ns_lshl_b32 s{U1}, s{U1}, 7\ns_add_u32 s{U0}, s{U0}, s{U1}\n"
                            f"s_and_b32 s{U1}, s{NQ}, 1\ns_lshl_b32 s{U1}, s{U1}, 2\ns_add_u32 s{U0}, s{U0}, s{U1}\ns_add_u32 s{U0}, s{U0}, {E_OFF}\n"
                            f"v_and_b32 v{aE}, 15, v{L}\nv_lshl_add_u32 v{aE}, v{aE}, 3, s{U0}"))
        tl.seq_at(CB(5), self.h_batch(2) + self.h_batch(3))
        tl.seq_at(CB(5) + 62, self.hstore(G8, 24, "hs2") + [Atom(Is("s_mov_b32 exec_lo, 0xffff0000\ns_mov_b32 exec_hi, 0") +
                  [costed(I(f"buffer_store_dword v{R[9]+4*i}, v{aE}, {sWS}, 0 offen offset:{512*i} sc1", tag="hs2"), 8) for i in range(4)] + [I("s_mov_b64 exec, -1")])])
        D0 = tl.n()
        WFD = [R[6], Qb, 24]
        accreg = [40, 44] + [R[7] + 4 * k for k in range(4)] + [R[5] + 4 * k for k in range(4)] + [R[9] + 4 * k for k in range(4)] + [G8 + 4 * k for k in range(4)]
        acc = lambda i, t: accreg[2 * t + i]
        GD = 0; DB = {}
        for st in range(10):
            s0 = tl.n(); DB[st] = s0 - 16
            tl.at(s0 + 0.1, self.stamp(f"D{st}"))
            for t in range(9):
                buf = WFD[GD % 3]; base = tl.n(); tag = f"D{st}_{t}"
                offs = [k * 9216 + i * 4608 + 32 * t for k in range(4) for i in range(2)]
                for rd in self.trs(buf, aP2tr, offs):
                    rd.tag = tag; rd.dl = base - 6; tl.at(base - 16, rd)
                if t == 8 and st < 9:
                    d = P2S[(st + 1) % 4] - P2S[st % 4]
                    tl.at(base - 15.9, I(f"v_add_u32 v{aP2tr}, {d}, v{aP2tr}" if d > 0 else f"v_subrev_u32 v{aP2tr}, {-d}, v{aP2tr}"))
                if t == 0: tl.at(base - 1.1, waitvm(f"h{st}"))
                tl.at(base - 1, waitlgkm(tag))
                for i in range(2):
                    for k in range(4):
                        d = vr(acc(i, t)); c = "0" if (st == 0 and k == 0) else d
                        tl.mfma(I(f"{MF} {d}, {vr(buf+4*k)}, {self.hreg(st,k,i)}, {c}"))
                GD += 1
        exl = Is(f"s_mul_i32 s{U0}, s{W}, 1152\ns_mov_b32 exec_hi, 15")
        for h in range(2): exl += self.flat([self.dma(aWD[0], sWO, f"s{T3}", U0, EXB + 576 * h, "ex", 6, pre=[I(f"s_add_u32 s{T3}, s{REX}, {(18*h+32)*1152}")])])
        exl = Atom(exl + [I("s_mov_b32 exec_hi, -1")])
        def inter(a, b):
            o = []
            for k in range(max(len(a), len(b))):
                if k < len(a): o.append(a[k])
                if k < len(b): o.append(b[k])
            return o
        S0 = lambda st: DB[st] + 16
        EH = Kb
        ewreg = lambda t: (Kb + 4 + 2 * t) if t < 6 else (Cb + 2 * (t - 6))
        ehl = [[costed(I(f"buffer_load_dwordx2 {vr(EH+2*i,2)}, v{aE}, {sWS}, s{TK} offen offset:{512*i} sc1", tag="eh"), 3)] for i in range(2)]
        self.barrier(DB[0], lg=["C1_8_3"], vm=["wd0"])
        f3 = opt.get("f3", 1)
        tl.seq_at(DB[0], self.wd_batch(3))
        tl.at(D0 - 46, self.epi_pair(Kb, Vb, Vb, 0)); tl.at(D0 + 2, self.epi_pair(Cb, U8, Vb, 1))
        hs3 = self.hstore(Vb, 32, "hs3")
        tl.seq_at(D0 + 12, hs3)
        pub = {f3: (3, ["hs1"]), opt.get("f4", 3): (4, ["hs2"]), opt.get("f5", 4): (5, ["hs3"])}
        chk = {opt.get("c3", 3): (3, self.h_batch(4) + self.h_batch(5)), opt.get("c4", 5): (4, self.h_batch(6) + self.h_batch(7) + ehl), opt.get("c5", 6): (5, self.h_batch(8) + self.h_batch(9))}
        assert len(pub) == 3 and len(chk) == 3
        for st in range(1, 10):
            pre = post = None; vm = [f"wd{st}"] + (["ex"] if st == 7 else [])
            if st in chk:
                v, hh = chk[st]
                tl.at(DB[st] - opt.get("plead", 50), self.poll_issue((f"p{v}", vF, vP, sWS)))
                pre = self.poll_check((f"p{v}", vF, vP, sWS, "le", v)); tl.seq_at(DB[st], hh)
            if st in pub: post = self.flag_publish(pub[st][0]); vm += pub[st][1]
            self.barrier(DB[st], vm=vm, pre=pre, post=post)
            if st <= 6:
                b = I("s_barrier"); b.dl = S0(st); tl.at(S0(st) - 0.5, b)
                tl.seq_at(S0(st), self.wd_batch(st + 3) + ([exl] if st == 2 else []))
        tl.at(DB[4] - 20, Is(f"s_lshl_b32 s{U0}, s{Q}, 7\ns_lshl_b32 s{U1}, s{M2}, 3\ns_add_u32 s{U0}, s{U0}, s{U1}\ns_lshl_b32 s{U1}, s{W}, 1\ns_add_u32 s{U0}, s{U0}, s{U1}\n"
                             f"s_lshl_b32 s{U0}, s{U0}, 9\ns_add_u32 s{TK}, s{U0}, {E_OFF}\nv_lshlrev_b32 v{aE}, 3, v{L}"))
        SX = DB[8] + 16
        tl.at(SX - 20, Is(f"v_lshrrev_b32 v{vT}, 2, v{L}\nv_mul_u32_u24 v{vT}, 288, v{vT}\nv_and_b32 v{vT2}, 3, v{L}\nv_lshl_add_u32 v{vT}, v{vT2}, 3, v{vT}\nv_add_u32 v{vT}, {EXB}, v{vT}"))
        for t in range(9):
            tl.at(SX + 8 * t - 4, I(f"ds_read_b64_tr_b16 {vr(ewreg(t),2)}, v{vT} offset:{32*t}", tag=f"ew{t}"))
            tl.at(SX + 8 * t + 12, ([waitvm("eh")] if t == 0 else []) + [waitlgkm(f"ew{t}")] +
                  [I(f"v_mfma_f32_16x16x16_bf16 {vr(acc(i,t))}, {vr(ewreg(t),2)}, {vr(EH+2*i,2)}, {vr(acc(i,t))}") for i in range(2)])
        S9 = DB[9] + 16
        GRP = U1
        tl.at(S9 - 40, Is(f"s_lshl_b32 s{GRP}, s{M2}, 2\ns_add_u32 s{GRP}, s{GRP}, s{NT}\ns_lshl_b32 s{GRP}, s{GRP}, 2\ns_add_u32 s{U0}, s{GRP}, s{W}\ns_lshl_b32 s{U0}, s{U0}, 2\n"
                          f"s_add_u32 s{U0}, s{U0}, s{Q}\ns_mul_i32 s{U0}, s{U0}, 9216\ns_add_u32 s{U0}, s{U0}, {XB_OFF}\nv_add_u32 v{aH}, s{U0}, v{aL16}\n"
                          f"s_add_u32 s{U0}, s{MP2}, {OWN}\nv_add_u32 v{aMisc}, s{U0}, v{aL16}\ns_mov_b32 s28, s40\ns_mov_b32 s29, s41"))
        tl.at(S9 - 20, Atom(Is(f"s_cmp_eq_u32 s{W}, s{Q}\ns_cselect_b32 s30, 0, s42")))
        PKR = [U8 + 4 * (t % 4) for t in range(9)]
        for t in range(9):
            p = S9 + 8 * t + 10
            cv = [I(f"v_cvt_pk_bf16_f32 v{PKR[t]+2*i+h}, v{acc(i,t)+2*h}, v{acc(i,t)+2*h+1}") for i in range(2) for h in range(2)]
            tl.at(p, cv + [costed(I(f"buffer_store_dwordx4 {vr(PKR[t])}, v{aH}, {sXB}, s{T3} offen offset:{(t%4)*1024} sc1{' nt' if opt.get('ntxs') else ''}", tag="xs"), 12),
                           I(f"ds_write_b128 v{aMisc}, {vr(PKR[t])} offset:{1024*t}", tag="xw")])
            tl.items[-1][2][4].prep = [I(f"s_mov_b32 s{T3}, {(t//4)*4096}")]; tl.items[-1][2][4].nopace = True
        END = tl.n() + 10
        fin = []
        F = lambda s: fin.extend(Is(s))
        fin += self.stamp("mainend")
        F(f"s_add_u32 s{U0}, s{GRP}, s{Q}\ns_mul_i32 s{U0}, s{U0}, {4*9216}\ns_lshl_b32 s{T0}, s{W}, 11\ns_add_u32 s{U0}, s{U0}, s{T0}\ns_add_u32 s{U0}, s{U0}, {XB_OFF}\nv_add_u32 v{aP2H}, s{U0}, v{aL16}")
        for z in range(3): F(f"s_add_u32 s{T1+z}, s{Q}, {z+1}\ns_and_b32 s{T1+z}, s{T1+z}, 3\ns_mul_i32 s{T1+z}, s{T1+z}, 9216")
        F(f"s_mul_i32 s{U0}, s{Q}, 9216\ns_add_u32 s{U0}, s{U0}, s{T0}\ns_add_u32 s{U0}, s{U0}, {OWN}\nv_add_u32 v{aKV}, s{U0}, v{aL16}")
        F(f"s_lshl_b32 s{U0}, s{MT}, 5\ns_and_b32 s{TK}, s{N}, 7\ns_add_u32 s{U0}, s{U0}, s{TK}\ns_lshl_b32 s{U0}, s{U0}, 7\ns_add_u32 s{U0}, s{U0}, {FL_OFF}\nv_and_b32 v{vP}, 3, v{L}\nv_lshl_add_u32 v{vP}, v{vP}, 10, s{U0}")
        SEL = 24
        F(f"v_bfe_u32 v1, v{L}, 2, 2\nv_lshrrev_b32 v2, 4, v{L}\nv_cmp_eq_u32 vcc, v1, v2\nv_and_b32 v3, 1, v{L}\nv_lshlrev_b32 v3, 4, v3\nv_mov_b32 v4, 0x3f80\nv_lshlrev_b32 v4, v3, v4\nv_cndmask_b32 v4, 0, v4, vcc")
        F(f"v_and_b32 v3, 2, v{L}\nv_cmp_eq_u32 vcc, 0, v3\nv_mov_b32 v{SEL+2}, 0\nv_mov_b32 v{SEL+3}, 0\nv_cndmask_b32 v{SEL}, 0, v4, vcc\nv_cndmask_b32 v{SEL+1}, v4, 0, vcc")
        F(f"v_mov_b32 v{SEL+4}, 0\nv_mov_b32 v{SEL+5}, 0\nv_mov_b32 v{SEL+6}, v{SEL}\nv_mov_b32 v{SEL+7}, v{SEL+1}")
        F(f"s_lshl_b32 s{U0}, s{W}, 12\ns_add_u32 s{U0}, s{U0}, {FIN}\nv_and_b32 v1, 15, v{L}\nv_mul_u32_u24 v1, 112, v1\nv_lshl_add_u32 v1, v2, 3, v1\nv_add_u32 v1, s{U0}, v1")
        F(f"s_lshl_b32 s{TK}, s{M2}, 7\ns_lshl_b32 s{TH}, s{Q}, 5\ns_add_u32 s{TK}, s{TK}, s{TH}\ns_mul_i32 s{TK}, s{TK}, 1152\ns_mul_i32 s{TH}, s{NT}, 288\ns_add_u32 s{TK}, s{TK}, s{TH}\ns_lshl_b32 s{TH}, s{W}, 6\ns_add_u32 s{TK}, s{TK}, s{TH}")
        for j in range(3):
            F(f"v_add_u32 v8, {64*j}, v{L}\nv_mul_u32_u24 v9, 10923, v8\nv_lshrrev_b32 v9, 16, v9\nv_mul_u32_u24 v10, 6, v9\nv_sub_u32 v8, v8, v10\nv_lshlrev_b32 v8, 4, v8")
            F(f"v_mul_u32_u24 v10, 112, v9\nv_add3_u32 v{2+j}, v10, v8, s{U0}\nv_mul_u32_u24 v10, 1152, v9\nv_add3_u32 v{5+j}, v10, v8, s{TK}")
        fin += [waitlgkm("xw"), waitvm("xs"), I("s_barrier")] + self.stamp("drained") + self.flag_publish(6)
        GBR = R[0]; SUM = R[4]
        for u in range(3): fin.append(I(f"ds_read_b128 {vr(GBR+16*u)}, v{aKV} offset:{1024*u}", tag=f"go{u}"))
        fin += self.poll_issue(("p6", vF, vP, sWS)) + self.poll_check(("p6", vF, vP, sWS, "le", 6)) + [I("s_barrier")] + self.stamp("polled")
        for u in range(3):
            for z in range(3):
                fin.append(I(f"buffer_load_dwordx4 {vr(GBR+16*u+4+4*z)}, v{aP2H}, {sWS}, s{T1+z} offen offset:{1024*u} sc1{' nt' if opt.get('ntg') else ''}", tag=f"g{u}{z}"))
        for u in range(3):
            fin.append(waitlgkm(f"go{u}"))
            for h in range(2): fin.append(I(f"{MF} {vr(SUM+8*u+4*h)}, {vr(SEL+4*h)}, {vr(GBR+16*u)}, 0"))
        for u in range(3):
            for z in range(3):
                fin.append(waitvm(f"g{u}{z}"))
                for h in range(2): fin.append(I(f"{MF} {vr(SUM+8*u+4*h)}, {vr(SEL+4*h)}, {vr(GBR+16*u+4+4*z)}, {vr(SUM+8*u+4*h)}"))
        for u in range(3):
            for h in range(2):
                b = SUM + 8 * u + 4 * h
                F(f"v_cvt_pk_bf16_f32 v{b}, v{b}, v{b+1}\nv_cvt_pk_bf16_f32 v{b+1}, v{b+2}, v{b+3}")
                fin.append(I(f"ds_write_b64 v1, {vr(b,2)} offset:{32*u + 16*112*h}", tag="fw"))
        fin += self.stamp("summed")
        for j in range(3): fin.append(I(f"ds_read_b128 {vr(32+4*j)}, v{2+j}", tag=f"fr{j}"))
        for j in range(3):
            fin.append(waitlgkm(f"fr{j}"))
            fin.append(I(f"buffer_store_dwordx4 {vr(32+4*j)}, v{5+j}, {sOUT}, 0 offen", tag="o"))
        if opt.get("stamps"):
            F("s_waitcnt vmcnt(0)")
            fin += self.stamp("end"); F("s_waitcnt lgkmcnt(0)"); fin += self.stamp("x")
            F(f"v_mov_b32 v{vFV}, s98\ns_memrealtime s[98:99]\nbuffer_store_dword v{vFV}, off, {sWS}, s96 offset:1016\ns_waitcnt lgkmcnt(0)\nv_mov_b32 v{vF2}, s98\nbuffer_store_dword v{vF2}, off, {sWS}, s96 offset:1020")
            if opt.get("dbgxcc"):
                F(f"s_waitcnt vmcnt(0)\ns_cmp_ge_u32 s2, 16\ns_cbranch_scc1 L_end\ns_cmp_lg_u32 s{W}, 0\ns_cbranch_scc1 L_end")
                F(f"buffer_load_dword v64, off, {sWS}, s96 offset:1016 sc1\nbuffer_load_dword v65, off, {sWS}, s96 offset:1020 sc1\ns_getreg_b32 s{U0}, hwreg(HW_REG_XCC_ID)\ns_and_b32 s{U0}, s{U0}, 15\ns_waitcnt vmcnt(0)")
                F(f"v_sub_u32 v64, v65, v64\nv_mul_u32_u24 v64, 100, v64\nv_add_u32 v64, s{U0}, v64\ns_lshl_b32 s{U0}, s2, 2\nbuffer_store_dword v64, off, {sDBG}, s{U0} sc1")
            if opt.get("dbgout"):
                sel = [0, 1, 2, 3, 5, 12, 15, 18, 21, 26, 31, 32, 33, 35, 254, 255]
                F(f"s_waitcnt vmcnt(0)\ns_lshl_b32 s{U0}, s2, 2\ns_add_u32 s{U0}, s{U0}, s{W}\ns_cmp_lg_u32 s{U0}, {opt['dbgout']-1}\ns_cbranch_scc1 L_end")
                for i, x in enumerate(sel): F(f"buffer_load_dword v{64+i}, off, {sWS}, s96 offset:{4*x} sc1")
                F("s_waitcnt vmcnt(0)")
                for i, x in enumerate(sel): F(f"buffer_store_dword v{64+i}, off, {sDBG}, 0 offset:{4*i} sc1")
            sys.stderr.write("STAMPS " + ",".join(self.stamps[:-1]) + "\n")
        fin.append(I("s_endpgm"))
        tl.at(END, Atom(fin))
        rep = {}
        ins = self.pro + schedule(tl, rep, opt.get('stgap', 0), opt.get('bk', 80), 16.3, opt.get('pipe0', 0), opt.get('fill', 1))
        if opt.get("stamps") == 2:
            self.numbering = True; o2 = []
            for x in ins:
                if hasattr(x, "stampname"): o2 += self.stamp(*x.stampname)
                else: o2.append(x)
            ins = o2
            sys.stderr.write("STAMPS " + ",".join(self.stamps[:-1]) + "\n")
            open("stamps.txt", "w").write(",".join(self.stamps[:-1]))
        ins = resolve_waits(ins)
        ins = hoist_m0(ins)
        ins, added = fix_hazards(ins, verbose=opt.get("verbose"))
        errs = check_waits(ins) + check_m0(ins)
        slow, _ = fix_hazards(self.slow)
        sys.stderr.write(f"instrs={len(ins)} mfma={sum(x.kind=='mfma' for x in ins)} nop_states_added={added} errors={errs} overfull_gaps={rep['over']}\n")
        if opt.get("rep"):
            sys.stderr.write(f"A0={A0} B0={B0} C0={C0} D0={D0}\n")
            tl_ = rep["tline"]; sys.stderr.write(f"sim: A {tl_[B0]:.0f} B {tl_[C0]-tl_[B0]:.0f} C {tl_[D0]-tl_[C0]:.0f} D {tl_[-2]-tl_[D0]:.0f} stall {rep['simstall']:.0f} waits: " + " ".join(rep["stalls"]) + "\n")
            sys.stderr.write("shadow: " + " ".join(rep["shadow"]) + "\n")
            sys.stderr.write("slack(issue_last, wait, diff): " + " ".join(f"{t}:{v}" for t, v in rep["slack"].items()) + "\n")
            for k, v in sorted(rep["stat"].items()): sys.stderr.write(f"  gaps {72*k}..: {' '.join(v)}\n")
        head = open("gated_mix__linear_attn_block__glu_gated_bilinear__prompt.s.ref").read().split("; Override")[0]
        txt = head + "; @launch grid=(256,1,1) block=(256,1,1) lds=163840\n"
        txt += f'.amdgcn_target "amdgcn-amd-amdhsa--gfx950"\n.text\n.globl {NAME}\n.p2align 8\n.type {NAME},@function\n{NAME}:\n'
        txt += text_of(ins) + text_of(slow) + "L_end:\n  s_endpgm\n"
        txt += f'''.section .rodata,"a"
.p2align 6
.amdhsa_kernel {NAME}
  .amdhsa_next_free_vgpr 512
  .amdhsa_next_free_sgpr 102
  .amdhsa_accum_offset 256
  .amdhsa_float_denorm_mode_32 3
  .amdhsa_group_segment_fixed_size 0
  .amdhsa_kernarg_size 88
  .amdhsa_user_sgpr_count 2
  .amdhsa_user_sgpr_kernarg_segment_ptr 1
  .amdhsa_system_sgpr_workgroup_id_x 1
.end_amdhsa_kernel
'''
        return txt

if __name__ == "__main__":
    opt = {}
    out = sys.argv[1]
    for a in sys.argv[2:]:
        k, v = a.split("="); opt[k] = float(v) if "." in v else int(v)
    open(out, "w").write(Gen(opt).build())
    import subprocess
    r = subprocess.run(["clang", "-x", "assembler", "-target", "amdgcn-amd-amdhsa", "-mcpu=gfx950", "-c", out, "-o", "chk.o"], capture_output=True, text=True)
    if r.returncode: print("ASSEMBLY FAILED", r.stderr[:2000])
```

```python
import sys
from asmlib import *
from sched import schedule

NAME = "gated_mix__linear_attn_block__glu_gated_bilinear__prompt_kernel"
H_OFF, E_OFF, KV_OFF, FL_OFF, XB_OFF, WS_SZ = 0, 0x1400000, 0x1480000, 0x1580000, 0x1600000, 0x2900000
G_OFF = 0x1590000
ST_OFF = 0x2800000
XS = [0, 32768]; WS_ = [98304, 114688, 131072]; MISC = 147456
QSB = [65536, 32768, 0]
GUB = [MISC + 4096, 98304, 110592]
HCS = [122880, 73728, 98304]
P2S = [0, 36864, 122880, 73728]
EXB = 110592
KVS = 159744
OWN = 122880
FIN = 73728
sX, sQKV, sWO, sWG, sWU, sWD, sGW, sOUT, sDBG, sWS, sGU = [f"s[{a}:{a+3}]" for a in range(4, 48, 4)]
sFL = sGW
W, MT, N, Q, M2, NT, J, FLAG = 48, 49, 50, 51, 52, 53, 54, 55
T0, T1, T2, T3 = 56, 57, 58, 59
MX, MHC, MQKV, MW1K, MP2 = 60, 61, 62, 63, 64
SOFX = 64
RA, RB, RM, RO = 72, 73, 74, 75
SPIN, NL1K = 54, 77
MASK2 = "s[78:79]"; MASKQ0 = "s[80:81]"
REX, U0, U1, NONCE = 82, 83, 84, 85
U2 = 54
TH, TK = 90, 91
NQ = 0
KP = [86, 87, 3, 100, 101, 97, 88, 89, 1]
WO4 = [65, 66, 67, 68]; HO4 = [69, 70, 76, 4]; RB2 = [5, 6]; RM2 = [7, 8]; RO2 = [9, 10]; PH2 = [11, 72]
L = 0
aXd = [1, 2]; aWd = 3; aWtr = [4, 5, 6, 7]; aXr = [8, 9]; aGr = 10; aH = 11
aQKVd, aGUd, aQKVtr, aCtr, aGUtr = 12, 13, 14, 15, 16
aHCd = 17; aHCtr = [18, 19]; vF, vP, vT, vT2 = 20, 21, 22, 23
aWd2, vXb, aQ2, aQ3 = 20, 21, 22, 23
aHCd2 = 63; vZ = 60
aWD = list(range(1, 10)); aP2tr = 10; aP2H = 12; aKV = 13; aMisc = 14; aL16 = 15; aE = 16
WF = [24, 32, 40]; GATE = 48; vFV = 51; vF2 = 55; vP2 = 59
R = [64 + 16 * i for i in range(10)]
def vr(a, n=4): return f"v[{a}:{a+n-1}]"
def xreg(p, t, i):
    f = 4 * t + i
    return f"a[{32*p+4*f}:{32*p+4*f+3}]" if p < 8 else vr(224 + 4 * f)
MF = "v_mfma_f32_16x16x32_bf16"
LOG2E, EPS = "0x3fb8aa3b", "0x358637bd"
def Is(s): return [I(x) for x in s.strip().split("\n")]
def costed(i, c, urgent=False): i.cost = c; i.urgent = urgent; return i
def fence(w): w.fence = True; return w

class Gen:
    def __init__(self, opt):
        self.opt = opt; self.tl = Timeline(); self.slow = []; self.nl = 0; self.pro = []; self.stamps = []; self.bstamps = []
        self.cST = opt.get("cst", 16)
        self.c = dict(x=4.8, q=11.0, g=18.0, hc=9.6, wd=opt.get("cwd", 5.6), h=opt.get("ch", 4.4))
        sc = opt.get("csc", 1.0)
        for k in ("q", "g", "hc"): self.c[k] *= sc
    def lab(self, s): self.nl += 1; return f"L_{s}_{self.nl}"
    def dma(self, vaddr, srd, soff, m0base, m0imm, tag, cost, imm=0, pre=[]):
        m0t = f"s_add_u32 m0, s{m0base}, {m0imm}"
        offs = f" offset:{imm}" if imm else ""
        nt = " nt" if self.opt.get("ntx" if srd == sX else ("ntq" if srd == sQKV else ("ntd" if srd in (sWD, sWO) else "ntw")), 0) else ""
        d = costed(I(f"buffer_load_dwordx4 v{vaddr}, {srd}, {soff} offen{offs}{nt} lds", tag=tag), cost)
        d.m0exp = m0t; d.prep = [I(m0t)] + list(pre)
        return [d]
    def flat(self, bundles):
        o = []; last = {}
        for b in bundles:
            for x in b:
                for p in getattr(x, "prep", []):
                    r = tuple(p.writes)
                    if last.get(r) != p.text: o.append(I(p.text)); last[r] = p.text
                o.append(x)
        return o
    def w0only(self, body):
        lb = self.lab("w0")
        for x in body: x.skip = True
        return Atom([I(f"s_cmp_lg_u32 s{W}, 0"), I(f"s_cbranch_scc1 {lb}")] + body + [I(f"{lb}:")])
    def flag_publish(self, val):
        return Is(f"s_add_u32 s{U2}, s{NONCE}, {val}\nv_mov_b32 v{vFV}, s{U2}") + [costed(I(f"buffer_store_dword v{vFV}, v{vZ}, {sWS}, s{FLAG} offen sc1", tag=f"fl{val}"), 1, True)]
    def poll_ld(self, dst, addr, srd, tag=None):
        x = costed(I(f"buffer_load_dword v{dst}, v{addr}, {srd}, 0 offen sc1", nocount=tag is None, tag=tag), 2, True); x.lat = 800
        return x
    def poll(self, ipos, cpos, tag, d, a, s, need):
        tl = self.tl
        tl.at(ipos, self.poll_ld(d, a, s, tag))
        ok = self.lab("ok"); sl = self.lab("slow"); lp = self.lab("lp")
        if need is None: test = [I(f"v_readfirstlane_b32 s{NONCE}, v{d}")]; cmp = f"s_cmp_lg_u32 s{NONCE}, 0"
        else: test = Is(f"v_subrev_u32 v{d}, s{NONCE}, v{d}\nv_add_u32 v{d}, {-need}, v{d}\nv_cmp_gt_u32 vcc, {8-need}, v{d}"); cmp = f"s_and_b32 s{SPIN}, vcc_lo, 0xff\ns_cmp_eq_u32 s{SPIN}, 0xff"
        self.slow += [I(f"{sl}:"), I("s_waitcnt vmcnt(0)"), I(f"v_mov_b32 v48, 0"), I(f"{lp}:"), I("s_sleep 1"), self.poll_ld(d, a, s), I("s_waitcnt vmcnt(0)")] + [I(t.text) for t in test] + \
                     [I("s_nop 1")] + Is(cmp) + Is(f"s_cbranch_scc1 {ok}\nv_add_u32 v48, 1, v48\ns_nop 0\nv_readfirstlane_b32 s{SPIN}, v48\ns_nop 0\ns_cmp_lt_u32 s{SPIN}, 0x40000\ns_cbranch_scc1 {lp}\ns_branch {ok}")
        for x in test: x.dl = int(cpos) + 3
        tl.at(cpos, [waitvm(tag)] + test)
        b = Atom(Is(cmp) + [I(f"s_cbranch_scc0 {sl}"), I(f"{ok}:")]); b[0].fence = True; b[0].dl = int(cpos) + 5
        b[-2].writes = {("v", d), ("vcc", 0), ("s", SPIN)} | ({("s", NONCE)} if need is None else set())
        b[-2].reads = {("v", a)}
        tl.at(cpos + 0.01, b)
    def nonce_loads(self):
        lb = self.lab("n0")
        body = Is(f"v_lshlrev_b32 v{R[8]+4}, 7, v{L}\ns_mov_b32 s{U0}, {FL_OFF}") + \
               [x for k in range(4) for x in ([I(f"s_add_u32 s{U0}, s{U0}, 8192")] if k else []) + [costed(I(f"buffer_load_dwordx4 {vr(R[9]+4*k)}, v{R[8]+4}, {sWS}, s{U0} offen sc1", nocount=True, tag="nl"), 0, True)]]
        for x in body: x.skip = True
        return Atom([I(f"s_or_b32 s{U0}, s2, s{W}"), I(f"s_cbranch_scc1 {lb}")] + body + [I(f"{lb}:")])
    def pick_nonce(self):
        lb = self.lab("n1"); lp = self.lab("n2"); r = R[9]
        body = [waitvm("nl")] + [I(f"v_lshrrev_b32 v{r+k}, 3, v{r+k}") for k in range(16)] + Is(f"s_mov_b32 s{U0}, 0\n{lp}:\ns_add_u32 s{U0}, s{U0}, 1\nv_cmp_eq_u32 vcc, s{U0}, v{r}")
        for k in range(1, 16): body += Is(f"v_cmp_eq_u32 s[58:59], s{U0}, v{r+k}\ns_or_b64 vcc, vcc, s[58:59]")
        body += Is(f"s_cbranch_scc1 {lp}\ns_lshl_b32 s{U0}, s{U0}, 3\nv_mov_b32 v{r}, s{U0}\ns_mov_b64 exec, 1")
        body += [costed(I(f"buffer_store_dword v{r}, off, {sDBG}, 0 sc1", nocount=True), 0, True), I("s_mov_b64 exec, -1")]
        for x in body: x.skip = True
        return Atom([I(f"s_or_b32 s{U0}, s2, s{W}"), I(f"s_cbranch_scc1 {lb}")] + body + [I(f"{lb}:")])
    def touch(self, tag, dst, addr, srd, lanes):
        t = costed(I(f"buffer_load_dword v{dst}, v{addr}, {srd}, s{T3} offen", tag=tag), self.opt.get("ctch", 40) * lanes / 41); t.lat = 1300; t.junk = True
        return t
    def stamp(self, name, early=False):
        if not self.opt.get("stamps") or self.opt.get("stamps") == 3: return []
        if self.opt.get("stamps") == 2 and not getattr(self, "numbering", name in ("entry", "kernarg", "issued")):
            ph = I("s_nop 0"); ph.stampname = (name, early); ph.urgent = True
            return Atom([ph, I("s_nop 0")])
        k = len(self.stamps); self.stamps.append(name)
        cur = 92 + 2 * (k % 2); prv = 92 + 2 * ((k + 1) % 2); tv = {'A': 61, 'B': 57, 'C': 48}.get(name[0], 61 if early else 52)
        o = [I(f"s_mem{'real' if self.opt.get('rt') else ''}time s[{cur}:{cur+1}]")]
        if k: o += [I(f"v_mov_b32 v{tv}, s{prv}"), costed(I(f"buffer_store_dword v{tv}, off, {sWS}, s96 offset:{4*(k-1)}", nocount=True), 0, True)]
        for x in o: x.junk = True
        return Atom(o)
    def phi_block(self, regs, tmps):
        o = []
        for k in range(0, len(regs), len(tmps)):
            rs = list(zip(regs[k:k + len(tmps)], tmps))
            o += [I(f"v_mul_f32 v{t}, {LOG2E}, v{r}") for r, t in rs]
            o += [I(f"v_exp_f32_e64 v{t}, v{t} clamp") for r, t in rs]
            o += [I(f"v_max_f32 v{r}, {EPS}, v{r}") for r, t in rs]
            o += [I(f"v_add_f32 v{r}, v{t}, v{r}") for r, t in rs]
        return o
    def epi_pair(self, g, u, dst, half, scale=False):
        o = []
        for i in range(4):
            for r in range(4): o.append(I(f"v_mul_f32 v{g+4*i+r}, v{g+4*i+r}, v{u+4*i+r}"))
            if scale:
                for r in range(4): o.append(I(f"v_mul_f32 v{g+4*i+r}, v{g+4*i+r}, v{GATE+4*i+2}"))
            for h in range(2): o.append(I(f"v_cvt_pk_bf16_f32 v{dst+4*i+2*half+h}, v{g+4*i+2*h}, v{g+4*i+2*h+1}"))
        return o
    def hstore(self, data, kk, tag, chunk0=False):
        o = []
        for i in range(4):
            c = H_OFF + i * 40960 + kk * 1024
            d = costed(I(f"buffer_store_dwordx4 {vr(data+4*i)}, v{aH}, {sWS}, s{T3} offen sc1{' nt' if self.opt.get('nts') else ''}", tag=tag), self.cST)
            d.prep = [I(f"s_add_u32 s{T3}, s{NL1K}, {c}") if chunk0 else I(f"s_mov_b32 s{T3}, {c}")]
            d.bias = self.opt.get("sbias_" + tag, self.opt.get("sbias", -120))
            o.append([d])
        return o
    def x_batch(self, p):
        o = []
        for b in range(8):
            o.append(self.dma(aXd[b & 1], sX, f"s{SOFX+b}" if b else "0", MX, XS[p % 2] + b * 1024, f"x{p}", self.c["x"] * (self.opt.get("coldm", 1) if p <= self.opt.get("coldp", 1) else 1)))
        if p < 8: o.append([I(f"v_lshl_add_u32 v{aXd[0]}, s{KP[p+1]}, 7, v{vXb}"), I(f"v_xor_b32 v{aXd[1]}, 64, v{aXd[0]}")])
        return o
    def wA_batch(self, p):
        o = []
        for h in range(2):
            for m, srd in ((0, sWG), (1, sWU)):
                b = [I(f"s_mul_i32 s{T0}, s{KP[p]}, {64*9216}")]
                o.append(self.dma(aWd2 if h else aWd, srd, f"s{T0}", MW1K, WS_[p % 3] + m * 8192 + h * 4096, f"w{p}", self.c["x"] * (self.opt.get("coldm", 1) if p <= self.opt.get("coldp", 1) else 1), pre=b))
        return o
    def x_reads(self, p):
        o = []
        for t in range(2):
            for i in range(4):
                o.append([I(f"ds_read_b128 {xreg(p,t,i)}, v{aXr[t]} offset:{i*2048}", tag=f"xr{p}")])
        d = XS[(p + 1) % 2] - XS[p % 2]
        op = f"v_add_u32 v%d, {d}, v%d" if d > 0 else f"v_subrev_u32 v%d, {-d}, v%d"
        o.append([I(op % (aXr[0], aXr[0])), I(op % (aXr[1], aXr[1]))])
        return o
    def qkv_batch(self, ss):
        o = []
        for kk in range(3):
            kp = 3 * ss + kk; base = QSB[ss] + 9216 * kk
            pre = [I(f"s_mul_i32 s{T1}, s{KP[kp]}, {64*3456}")]
            o.append(self.dma(aQKVd, sQKV, f"s{T1}", MW1K, base, f"qs{ss}", self.c["q"], pre=pre))
            o.append(self.dma(aQ2, sQKV, f"s{T1}", MW1K, base + 4096, f"qs{ss}", self.c["q"], pre=pre))
            d = self.dma(aQ3, sQKV, f"s{T1}", MQKV, base + 8192, f"qs{ss}", self.c["q"] / 4, pre=pre)[0]; d.prep_outer = d.prep
            o.append(Atom([I("s_mov_b64 exec, 0xffff"), d, I("s_mov_b64 exec, -1")]))
            o.append(self.dma(aGUd, sGU, f"s{T2}", MW1K, GUB[ss] + kk * 4096, f"qs{ss}", self.c["g"], pre=[I(f"s_mul_i32 s{T2}, s{KP[kp]}, {64*9216}")]))
        if ss == 0:
            for b in o:
                for x in b: x.bias = self.opt.get("q0bias", 0)
        return o
    def hc_batch(self, hs):
        o = []
        for k6 in range(6):
            ks = 6 * (hs % 3) + k6
            c = (hs // 3) * 64
            o.append(self.dma(aHCd2 if ks & 1 else aHCd, sGU, f"s{T2}", MHC, HCS[hs % 3] + k6 * 4096 - c, f"hc{hs}", self.c["hc"] * (self.opt.get("hc0m", 1) if hs == 0 else 1), imm=c, pre=[I(f"s_mul_i32 s{T2}, s{KP[ks//2]}, {64*9216}")]))
        return o
    def wd_batch(self, st):
        o = []
        if st < 4: p0 = f"s_mov_b32 s{T0}, s{WO4[st]}"
        elif st < 6: p0 = f"s_add_u32 s{T0}, s{RB2[st&1]}, {64*1152}"
        elif st < 8: p0 = f"s_add_u32 s{T0}, s{RB2[st&1]}, {96*1152}"
        else: p0 = f"s_add_u32 s{T0}, s{RM2[st&1]}, {512*1152}"
        p1 = f"s_mov_b32 s{T1}, s{RO2[st&1]}"
        for j in range(9):
            m0 = P2S[st % 4] + (j // 4) * 4096
            imm = (j % 4) * 1024; tag = f"wd{st}"; c = self.c["wd"]
            if st >= 8 and j == 4:
                a = self.dma(aWD[j], sWD, f"s{T0}", MP2, m0, tag, c, imm, pre=[I(p0)])[0]; b = self.dma(aWD[j], sWO, f"s{T1}", MP2, m0, tag, c, imm, pre=[I(p1)])[0]
                a.prep_outer = a.prep + b.prep[1:]
                o.append(Atom([I("s_mov_b32 exec_hi, 0"), a] + Is("s_mov_b32 exec_hi, -1\ns_mov_b32 exec_lo, 0") + [b, I("s_mov_b32 exec_lo, -1")]))
            elif st >= 8 and j > 4: o.append(self.dma(aWD[j], sWO, f"s{T1}", MP2, m0, tag, c, imm, pre=[I(p1)]))
            else: o.append(self.dma(aWD[j], sWD, f"s{T0}", MP2, m0, tag, c, imm, pre=[I(p0)]))
        return o
    def hreg(self, st, k, i): b = 32 * (st % 8) + 16 * i + 4 * k; return f"a[{b}:{b+3}]"
    def h_batch(self, st):
        o = []
        for i in range(2):
            for k in range(4):
                o.append([costed(I(f"buffer_load_dwordx4 {self.hreg(st,k,i)}, v{aP2H}, {sWS}, s{TH} offen offset:{k*1024} sc1{' nt' if self.opt.get('nth') else ''}", tag=f"h{st}"), self.opt.get("chm", 6) if st in (0, 4, 6, 8) else self.c["h"])])
                if st in (0, 4, 6, 8): o[-1][0].lat = 800
                o[-1][0].prep = [I(f"s_add_u32 s{TH}, s{HO4[st] if st < 4 else PH2[st&1]}, {H_OFF + (0 if st < 4 else (st & ~1)*4096) + i*40960}")]
        return o

    def prologue(self):
        P = self.pro
        A = lambda s: P.extend(Is(s))
        A(f"s_cmp_ge_u32 s2, 256\ns_cbranch_scc1 L_end")
        P.extend(self.stamp("entry", True))
        if self.opt.get("stamps"): A("s_memrealtime s[98:99]")
        A("s_load_dwordx16 s[64:79], s[0:1], 0\ns_load_dwordx4 s[80:83], s[0:1], 64\ns_load_dwordx2 s[84:85], s[0:1], 80")
        A(f"v_lshrrev_b32 v1, 6, v0\nv_and_b32 v{L}, 63, v0\nv_readfirstlane_b32 s{W}, v1")
        if self.opt.get("scramble"): A("s_lshr_b32 s3, s2, 5\ns_and_b32 s2, s2, 31\ns_lshl_b32 s2, s2, 3\ns_or_b32 s2, s2, s3")
        A(f"s_lshr_b32 s{J}, s2, 3\ns_and_b32 s{T0}, s2, 1\ns_bfe_u32 s{Q}, s2, 0x20001")
        A(f"s_lshl_b32 s{MT}, s{T0}, 2\ns_and_b32 s{NT}, s{J}, 3\ns_add_u32 s{MT}, s{MT}, s{NT}")
        A(f"s_lshr_b32 s{T1}, s{J}, 2\ns_lshl_b32 s{N}, s{Q}, 3\ns_add_u32 s{N}, s{N}, s{T1}")
        if self.opt.get("map1"):
            A(f"s_and_b32 s{MT}, s{J}, 7\ns_and_b32 s{N}, s2, 7\ns_lshl_b32 s{N}, s{N}, 2\ns_lshr_b32 s{T2}, s{J}, 3\ns_add_u32 s{N}, s{N}, s{T2}")
        A(f"s_lshl_b32 s{M2}, s{T0}, 3\ns_add_u32 s{M2}, s{M2}, s{T1}")
        A(f"s_lshl_b32 s{MX}, s{W}, 13\ns_lshl_b32 s{MW1K}, s{W}, 10\ns_lshl_b32 s{MQKV}, s{W}, 8")
        A(f"s_and_b32 s{T0}, s{W}, 1\ns_lshl_b32 s{T0}, s{T0}, 11\ns_lshr_b32 s{T2}, s{W}, 1\ns_lshl_b32 s{T2}, s{T2}, 10\ns_add_u32 s{MHC}, s{T0}, s{T2}")
        A(f"s_lshr_b32 s{T0}, s{N}, 2\ns_mul_i32 s{T0}, s{T0}, 1152\ns_and_b32 s{T2}, s{N}, 3\ns_lshl_b32 s90, s{T2}, 8\ns_add_u32 s90, s90, s{T0}")
        A(f"s_lshl_b32 s91, s{T2}, 5\ns_add_u32 s91, s91, s{T0}\ns_add_u32 s91, s91, 1024")
        o_ = self.opt
        A(f"s_and_b32 s{T0}, s{N}, 7\ns_lshr_b32 s{T0}, s{T0}, {o_.get('rs', 1)}\ns_mul_i32 s{T0}, s{T0}, {o_.get('ra', 2)}\ns_and_b32 s{T2}, s{MT}, 3\ns_mul_i32 s{T2}, s{T2}, {o_.get('rb', 2)}\ns_add_u32 s{T0}, s{T0}, s{T2}")
        A(f"s_lshr_b32 s{T2}, s{MT}, 2\ns_mul_i32 s{T2}, s{T2}, {o_.get('rc', 1)}\ns_add_u32 s{T0}, s{T0}, s{T2}\ns_mul_i32 s{T2}, s{T0}, 57\ns_lshr_b32 s{T2}, s{T2}, 9\ns_mul_i32 s{T2}, s{T2}, 9\ns_sub_u32 s{KP[0]}, s{T0}, s{T2}")
        for p in range(1, 8): A(f"s_add_u32 s{KP[p]}, s{KP[p-1]}, 1\ns_cmp_eq_u32 s{KP[p]}, 9\ns_cselect_b32 s{KP[p]}, 0, s{KP[p]}")
        A(f"s_lshl_b32 s{T3}, s{KP[0]}, 7")
        A(f"v_lshrrev_b32 v44, 3, v{L}\nv_lshrrev_b32 v45, 4, v{L}\nv_bfe_u32 v46, v{L}, 2, 2\nv_and_b32 v47, 3, v{L}")
        A(f"s_lshl_b32 s{T0}, s{MT}, 8\ns_lshl_b32 s{T2}, s{W}, 6\ns_add_u32 s{T0}, s{T0}, s{T2}")
        A(f"v_add_u32 v24, s{T0}, v44\nv_mul_u32_u24 v24, 1152, v24\nv_and_b32 v25, 7, v{L}\nv_xor_b32 v26, v25, v45\nv_lshl_add_u32 v{vXb}, v26, 4, v24\nv_add_u32 v{aXd[0]}, s{T3}, v{vXb}\nv_xor_b32 v{aXd[1]}, 64, v{aXd[0]}")
        A(f"s_lshl_b32 s{T0}, s{W}, 3\nv_add_u32 v24, s{T0}, v44\nv_mul_u32_u24 v24, 9216, v24\nv_add_u32 v24, s90, v24")
        A(f"s_and_b32 s{T0}, s{W}, 1\ns_lshl_b32 s{T0}, s{T0}, 1\nv_and_b32 v26, 1, v45\nv_or_b32 v26, s{T0}, v26\nv_lshrrev_b32 v27, 1, v25\nv_xor_b32 v26, v26, v27")
        A(f"v_lshl_add_u32 v24, v26, 5, v24\nv_and_b32 v28, 1, v{L}\nv_lshl_add_u32 v{aWd}, v28, 4, v24\nv_lshlrev_b32 v24, 4, v{L}")
        A(f"v_add_u32 v24, s{MW1K}, v24\nv_add_u32 v25, s{T3}, v24\nv_subrev_u32 v26, 1152, v25\nv_min_u32 v25, v25, v26\nv_cmp_gt_u32 vcc, 1152, v24\ns_nop 1\nv_cndmask_b32 v24, v24, v25, vcc")
        P.append(I("s_waitcnt lgkmcnt(0)"))
        def srd(dst, lo, size):
            d = int(dst[2:dst.index(":")])
            return f"s_mov_b32 s{d}, s{lo}\ns_and_b32 s{d+1}, s{lo+1}, 0xffff\ns_mov_b32 s{d+2}, {size}\ns_mov_b32 s{d+3}, 0x20000"
        A(f"v_add_u32 v{aWd2}, {32*9216}, v{aWd}")
        A(srd(sWG, 72, 5308416)); A(srd(sWU, 74, 5308416)); A(srd(sX, 64, 2359296))
        A(f"s_add_u32 s{KP[8]}, s{KP[7]}, 1\ns_cmp_eq_u32 s{KP[8]}, 9\ns_cselect_b32 s{KP[8]}, 0, s{KP[8]}")
        P.extend(self.flat(self.wA_batch(0)))
        A(srd(sGW, 78, 1152)); A(srd(sQKV, 66, 1990656)); A(srd(sWD, 76, 5308416)); A(srd(sOUT, 80, 2359296)); A(srd(sDBG, 82, 256)); A(srd(sWS, 84, WS_SZ))
        A(f"s_sub_u32 s12, s68, 18432\ns_subb_u32 s13, s69, 0\ns_and_b32 s13, s13, 0xffff\ns_mov_b32 s14, {663552+18432}\ns_mov_b32 s15, 0x20000")
        for b in range(1, 8): A(f"s_mov_b32 s{SOFX+b}, {9216*b}")
        A(f"s_lshl_b32 s{FLAG}, s{MT}, 5\ns_add_u32 s{FLAG}, s{FLAG}, s{N}\ns_lshl_b32 s{FLAG}, s{FLAG}, 7\ns_add_u32 s{FLAG}, s{FLAG}, {FL_OFF}")
        if self.opt.get("stamps"): A(f"s_lshl_b32 s96, s2, 2\ns_add_u32 s96, s96, s{W}\ns_lshl_b32 s96, s96, 10\ns_add_u32 s96, s96, {ST_OFF}")
        P.extend(self.stamp("kernarg", True))
        C = []
        B = lambda s: C.extend(Is(s))
        UA, UB = U0, U1
        B(f"s_bitcmp1_b32 s{W}, 0\ns_cselect_b32 s44, s20, s16\ns_cselect_b32 s45, s21, s17\ns_mov_b32 s46, 5308416\ns_mov_b32 s47, 0x20000")
        B(f"v_lshl_add_u32 v29, v45, 3, v46\nv_lshlrev_b32 v30, 7, v29\nv_lshl_add_u32 v30, v47, 3, v30\nv_add_u32 v30, {WS_[0]}, v30")
        B(f"v_lshrrev_b32 v31, 1, v46\nv_and_b32 v32, 1, v45\nv_lshl_or_b32 v31, v32, 1, v31")
        for k in range(4): B(f"v_xor_b32 v33, {k}, v31\nv_lshl_add_u32 v{aWtr[k]}, v33, 5, v30")
        B(f"v_and_b32 v33, 15, v{L}\nv_lshrrev_b32 v34, 1, v33\nv_xor_b32 v34, v34, v45\nv_lshlrev_b32 v35, 7, v33\nv_add_u32 v35, s{MX}, v35")
        B(f"v_lshl_add_u32 v{aXr[0]}, v34, 4, v35\nv_xor_b32 v{aXr[1]}, 64, v{aXr[0]}")
        B(f"v_lshlrev_b32 v{aGr}, 4, v45\nv_add_u32 v{aGr}, {MISC}, v{aGr}")
        B(f"s_lshl_b32 s{UA}, s{Q}, 7\ns_lshl_b32 s{UB}, s{MT}, 4\ns_add_u32 s{UA}, s{UA}, s{UB}\ns_lshl_b32 s{UB}, s{W}, 2\ns_add_u32 s{UA}, s{UA}, s{UB}")
        B(f"s_mul_i32 s{UA}, s{UA}, 40960\ns_and_b32 s{NL1K}, s{N}, 7\ns_lshl_b32 s{NL1K}, s{NL1K}, 10\ns_add_u32 s{UA}, s{UA}, s{NL1K}\nv_lshl_add_u32 v{aH}, v{L}, 4, s{UA}")
        B(f"s_xor_b32 s{NQ}, s{N}, {self.opt.get('qx', 0)}\ns_mul_i32 s{UB}, s{N}, 36\ns_mul_i32 s{UA}, s{NQ}, 36\nv_mov_b32 v38, s{UA}\nv_mov_b32 v39, s{UB}")
        for dst, sh, add in ((aQKVd, 6, 0), (aQ2, 6, 256), (aQ3, 4, 512)):
            B(f"s_lshl_b32 s{UA}, s{W}, {sh}\ns_add_u32 s{UA}, s{UA}, {add}\nv_add_u32 v33, s{UA}, v{L}\nv_mul_u32_u24 v34, 7282, v33\nv_lshrrev_b32 v34, 16, v34\nv_mul_u32_u24 v35, 9, v34\nv_sub_u32 v35, v33, v35")
            B(f"v_mul_u32_u24 v36, 21846, v35\nv_lshrrev_b32 v36, 16, v36\nv_cmp_gt_u32 vcc, 3, v35\nv_mul_u32_u24 v37, 3, v36\nv_sub_u32 v37, v35, v37\nv_cndmask_b32 v35, v39, v38, vcc")
            B(f"v_mul_u32_u24 v34, 3456, v34\nv_mul_u32_u24 v36, 1152, v36\nv_lshl_add_u32 v37, v37, 4, v35\nv_add3_u32 v{dst}, v34, v36, v37")
        B(f"v_lshrrev_b32 v34, 5, v{L}\nv_bfe_u32 v35, v{L}, 3, 2\nv_bfe_u32 v36, v{L}, 1, 2\nv_lshl_add_u32 v36, v34, 2, v36\nv_lshl_add_u32 v36, v35, 3, v36")
        B(f"s_lshr_b32 s{UA}, s{W}, 1\ns_lshl_b32 s{UA}, s{UA}, 5\nv_add_u32 v36, s{UA}, v36\nv_mul_u32_u24 v36, 9216, v36\nv_add_u32 v36, s91, v36\nv_and_b32 v37, 1, v{L}\nv_lshl_add_u32 v{aGUd}, v37, 4, v36")
        B(f"v_mul_u32_u24 v34, 144, v29\nv_add_u32 v34, {QSB[0]}, v34\nv_lshl_add_u32 v{aQKVtr}, v47, 3, v34")
        B(f"v_mul_u32_u24 v35, 48, v47\nv_add_u32 v35, 80, v35\nv_cmp_gt_u32 vcc, 2, v47\nv_mov_b32 v36, 32\nv_lshlrev_b32 v{aGUtr}, 3, v{L}\nv_cndmask_b32 v35, v36, v35, vcc\nv_add_u32 v{aCtr}, v34, v35")
        B(f"v_add_u32 v{aGUtr}, {GUB[0]}, v{aGUtr}")
        B(f"s_lshr_b32 s{UA}, s{W}, 1\ns_lshl_b32 s{UA}, s{UA}, 2\nv_add_u32 v34, s{UA}, v29\nv_mul_u32_u24 v34, 9216, v34\ns_add_u32 s{UA}, s90, 128\nv_add_u32 v34, s{UA}, v34")
        B(f"v_lshrrev_b32 v35, 1, v47\nv_xor_b32 v35, v35, v32\nv_lshl_add_u32 v34, v35, 5, v34\nv_lshl_add_u32 v{aHCd}, v37, 4, v34")
        B(f"v_lshrrev_b32 v34, 2, v{L}\nv_lshlrev_b32 v34, 6, v34\nv_lshl_add_u32 v34, v47, 3, v34\nv_add_u32 v34, {HCS[0]}, v34")
        B(f"v_lshl_add_u32 v{aHCtr[0]}, v32, 5, v34\nv_xor_b32 v{aHCtr[1]}, 32, v{aHCtr[0]}")
        B(f"v_cmp_eq_u32 {MASK2}, 2, v47\ns_mul_i32 s{MP2}, s{W}, 9216")
        B(f"v_add_u32 v{aHCd2}, {32*9216}, v{aHCd}\nv_lshlrev_b32 v{vP2}, 10, v{L}")
        self.p2s = []; B = lambda s: self.p2s.extend(Is(s))
        B(f"s_mul_i32 s{UA}, s{Q}, {1152*1152}\ns_lshr_b32 s{UB}, s{W}, 1\ns_mul_i32 s{UB}, s{UB}, {128*1152}\ns_add_u32 s{RA}, s{UA}, s{UB}\ns_and_b32 s{UB}, s{W}, 1\ns_mul_i32 s{UB}, s{UB}, {32*1152}\ns_add_u32 s{RA}, s{RA}, s{UB}")
        B(f"s_mul_i32 s{UB}, s{W}, {128*1152}\ns_add_u32 s{RB}, s{UA}, s{UB}\ns_mul_i32 s{UB}, s{W}, {16*1152}\ns_add_u32 s{RM}, s{UA}, s{UB}")
        B(f"s_lshl_b32 s{UA}, s{Q}, 3\ns_add_u32 s{UB}, s{UA}, s{W}\ns_xor_b32 s{RO}, s{UB}, {self.opt.get('qx', 0)}\ns_mul_i32 s{RO}, s{RO}, {18*1152}\ns_add_u32 s{UB}, s{UB}, s{W}\ns_mul_i32 s{REX}, s{UB}, {18*1152}")
        loads = self.x_batch(0) + [self.dma(24, sGW, "0", MW1K, MISC, "gw", 4.8)]
        npro = self.opt.get("npro", 2)
        self.first = [self.x_batch(1), self.wA_batch(1), self.wA_batch(2), self.x_batch(2)]
        assert npro <= 3
        for b in self.first[:npro]: loads += b
        self.first = self.first[npro:]
        k = 0; nw = max(5, -(-len(C) // len(loads)))
        for b in loads:
            P.extend(self.flat([b])); P.extend(C[k:k + nw]); k += nw
        P.extend(C[k:])
        if self.opt.get("codepf", 1):
            A(f"s_getpc_b64 s[58:59]\nL_pc:\ns_lshl_b32 s{U0}, s{J}, 2\ns_add_u32 s{U0}, s{U0}, s{W}\ns_lshl_b32 s{U0}, s{U0}, 2\nv_and_b32 v25, 3, v{L}\nv_add_lshl_u32 v25, v25, s{U0}, 7\nv_min_u32 v25, L_end-L_pc, v25")
            P.append(I("global_load_dword v224, v25, s[58:59]", tag="pf"))
        P.extend(self.nonce_loads())
        P.append(I("s_nop 0")); P[-1].pgentry = True
        P.extend(self.stamp("issued", True))
        P.append(waitvm("x0"))
        P.extend(sum(self.x_reads(0), []))
        P.append(waitvm("w0", "gw")); P.append(I("s_barrier"))

    def group(self, acc, buf, p, first, x_is_a, reads, tag, early=False):
        tl = self.tl; base = tl.n()
        for rd in reads:
            rd.tag = tag; rd.dl = base - (12 if early else 8); tl.at(base - 16, rd)
        tl.at(base - (8 if early else 1), waitlgkm(tag))
        for i in range(4):
            for t in range(2):
                w = vr(buf + 4 * t); x = xreg(p, t, i); d = vr(acc + 4 * i)
                c = "0" if (first and t == 0) else d
                tl.mfma(I(f"{MF} {d}, {x}, {w}, {c}" if x_is_a else f"{MF} {d}, {w}, {x}, {c}"))
        return base
    def trs(self, buf, addr, offs):
        return [I(f"ds_read_b64_tr_b16 {vr(buf+2*k,2)}, v{addr} offset:{o}") for k, o in enumerate(offs)]
    def barrier(self, pos, lg=(), vm=(), pre=None, post=None):
        tl = self.tl
        if pre and self.opt.get("stamps") != 2: tl.at(pos - 0.6, pre)
        b = ([waitlgkm(*lg)] if lg else []) + [waitvm(*vm), I("s_barrier")]
        b[-1].dl = int(pos)
        if self.opt.get("stamps") == 2: self.bstamps.append((pos, b, "/".join(vm), pre))
        if self.opt.get("stamps") == 2:
            e = pos < 650
            b = list(self.stamp("w:" + "/".join(vm) + ("+poll" if pre else ""), e)) + list(pre or []) + b + list(self.stamp("b", e))
        tl.at(pos - 0.5, Atom(b))
        if post: tl.at(pos - 0.4, post)

    def xbar(self, pos, lg=(), vm=()):
        b = Atom(([waitlgkm(*lg)] if lg else []) + ([waitvm(*vm)] if vm else []) + [I("s_barrier")]); b[-1].dl = int(pos); self.tl.at(pos - 0.5, b)
    def sel_frags(self, SEL, t1, t2, t3):
        return Is(f"v_bfe_u32 v{t1}, v{L}, 2, 2\nv_lshrrev_b32 v{t2}, 4, v{L}\nv_cmp_eq_u32 vcc, v{t1}, v{t2}\nv_and_b32 v{t1}, 1, v{L}\nv_lshlrev_b32 v{t1}, 4, v{t1}\nv_mov_b32 v{t3}, 0x3f80\n"
                  f"v_lshlrev_b32 v{t3}, v{t1}, v{t3}\nv_cndmask_b32 v{t3}, 0, v{t3}, vcc\nv_and_b32 v{t1}, 2, v{L}\nv_cmp_eq_u32 vcc, 0, v{t1}\nv_mov_b32 v{SEL+2}, 0\nv_mov_b32 v{SEL+3}, 0\n"
                  f"v_cndmask_b32 v{SEL}, 0, v{t3}, vcc\nv_cndmask_b32 v{SEL+1}, v{t3}, 0, vcc\nv_mov_b32 v{SEL+4}, 0\nv_mov_b32 v{SEL+5}, 0\nv_mov_b32 v{SEL+6}, v{SEL}\nv_mov_b32 v{SEL+7}, v{SEL+1}")
    def build(self):
        tl = self.tl; opt = self.opt
        self.prologue()
        G = 0
        A0 = tl.n()
        for b in self.first: tl.seq_at(A0, b)
        for p in range(9):
            s0 = tl.n()
            tl.at(s0 + 0.1, self.stamp(f"A{p}", True))
            for g in range(8):
                buf = WF[G % 3]; tile, mat = g // 2, g % 2
                offs = [(p % 3) * 16384 + mat * 8192 + ks * 4096 + i * 512 for ks in range(2) for i in range(2)]
                self.group(R[g], buf, p, p == 0, False, self.trs(buf, aWtr[tile], offs), f"A{p}_{g}")
                G += 1
            if p < 8:
                xp = s0 + (opt.get("xrd0", 20) if p == 0 else opt.get("xrd", 20))
                tl.at(xp - 0.1, fence(waitvm(f"x{p+1}")))
                tl.spread(xp, s0 + 38, self.x_reads(p + 1))
                self.barrier(s0 + 48, lg=[f"xr{p+1}", f"A{p}_7"], vm=[f"w{p+1}"], post=self.pick_nonce() if p == 1 else None)
                nxt = []
                if p + 3 <= 8: nxt += self.wA_batch(p + 3) + self.x_batch(p + 3)
                if p == opt.get("q0at", 0): nxt += self.qkv_batch(0)
                if p == 6: nxt += self.qkv_batch(1)
                if p == 7: nxt += self.qkv_batch(2)
                tl.seq_at(s0 + 48, nxt)
        s8 = A0 + 8 * 64
        late_touch = []; tc = []
        if opt.get("touch", 1):
            t2, a0, a1 = 49, 52, 56
            NP = opt.get("tpieces", 6); PL = -(-81 // NP)
            tc = Is(f"s_lshl_b32 s{U0}, s{J}, 2\ns_add_u32 s{U0}, s{U0}, s{W}\ns_lshl_b32 s{U1}, s{Q}, 7\ns_add_u32 s{U1}, s{U1}, s{U0}\ns_mul_i32 s{U1}, s{U1}, 81\nv_add_lshl_u32 v{a0}, v{L}, s{U1}, 7\n"
                    f"v_cmp_gt_u32 vcc, {PL}, v{L}\nv_mov_b32 v{t2}, 0x7f000000\ns_mul_i32 s{U0}, s{U0}, 11\ns_mul_i32 s{U1}, s{Q}, 1296\nv_cndmask_b32 v{a0}, v{t2}, v{a0}, vcc\n"
                    f"s_add_u32 s{U0}, s{U0}, s{U1}\ns_add_u32 s{U0}, s{U0}, 144\nv_add_lshl_u32 v{a1}, v{L}, s{U0}, 7\nv_cmp_gt_u32 vcc, 11, v{L}\nv_cndmask_b32 v{a1}, v{t2}, v{a1}, vcc")
            tl.at(A0 + 200, tc)
            for k in range(NP):
                t = self.touch(f"tch{k}", 48, a0, sWD, PL); t.prep = [I(f"s_mov_b32 s{T3}, {k*PL*128}")]; late_touch.append([t])
            t = self.touch("tchw", 48, a1, sWO, 11); t.prep = [I(f"s_mov_b32 s{T3}, 0")]; late_touch.append([t])
        for j in range(4):
            tl.at(s8 + 16 * (j + 1) + 2, self.epi_pair(R[2 * j], R[2 * j + 1], [R[9], R[5]][j // 2], j % 2))
        tl.seq_at(s8 + 44, self.hstore(R[9], 0, "hs0", True))
        B0 = tl.n()
        self.barrier(B0 - 16, vm=["qs0"])
        accB = [R[0], R[3], R[2], R[8], R[4], R[1]]
        for kp in range(9):
            ss = kp // 3
            if kp % 3 == 0: tl.at(tl.n() + 0.1, self.stamp(f"B{ss}"))
            for g in ([1, 2, 3, 0, 4, 5] if kp == 8 else ([0, 1, 2, 4, 5, 3] if kp == 0 else range(6))):
                buf = WF[G % 3]
                if g < 4:
                    a = aQKVtr if g < 3 else aCtr
                    offs = [((kp % 3) * 64 + ks * 32 + i * 4) * 144 + (48 * g if g < 3 else 0) for ks in range(2) for i in range(2)]
                else:
                    a = aGUtr
                    offs = [(((kp % 3) * 2 + ks) * 2 + (g - 4)) * 1024 + i * 512 for ks in range(2) for i in range(2)]
                b = tl.n()
                if g == 3:
                    gf = R[6] + 8 * (kp % 2)
                    for t in range(2):
                        x = I(f"ds_read_b128 {vr(gf+4*t)}, v{aGr} offset:{kp*128+t*64}", tag=f"gf{kp}"); x.dl = b - 16; tl.at(b - 24, x)
                self.group(accB[g], buf, kp, kp == 0, g in (1, 2, 3), self.trs(buf, a, offs), f"B{kp}_{g}", early=(g == 3))
                if g == 3:
                    tl.at(b - 7.5, [I(f"v_cndmask_b32_e64 v{buf+r}, v{buf+r}, v{gf+r}, {MASK2}") for r in range(8)])
                    tl.at(b - 8.1, waitlgkm(f"gf{kp}"))
                if kp % 3 == 2 and kp < 8:
                    if g == 2: tl.at(b - 15.9, I(f"v_subrev_u32 v{aQKVtr}, {QSB[ss]-QSB[ss+1]}, v{aQKVtr}"))
                    if g == 3: tl.at(b - 15.9, I(f"v_subrev_u32 v{aCtr}, {QSB[ss]-QSB[ss+1]}, v{aCtr}"))
                    if g == 5:
                        d = GUB[ss + 1] - GUB[ss]
                        tl.at(b - 15.9, I(f"v_add_u32 v{aGUtr}, {d}, v{aGUtr}" if d > 0 else f"v_subrev_u32 v{aGUtr}, {-d}, v{aGUtr}"))
                G += 1
        tl.seq_at(B0 + 12, self.hstore(R[5], 1, "hs0", True))
        self.poll(B0 - 60, B0 + 50, "p0", vF2, vP2, sDBG, None)
        self.barrier(B0 + 128, lg=["B2_5"], vm=["qs1"])
        tl.seq_at(B0 + 128, self.hc_batch(0) + self.hc_batch(1))
        self.barrier(B0 + 272, vm=["qs2"])
        for k, b in enumerate(late_touch): tl.at(B0 + opt.get("tpos2", 300) + k * opt.get("tstep", 50), b)
        OFF = 71
        pc = Is(f"s_mul_i32 s{U0}, s{NT}, 288\ns_lshl_b32 s{OFF}, s{Q}, 1\ns_min_u32 s{U1}, s{Q}, 1\ns_add_u32 s{OFF}, s{OFF}, s{U1}\ns_lshl_b32 s{TK}, s{OFF}, 1")
        t0, t1 = 53, 61
        pc += Is(f"v_or_b32 v{t0}, s{W}, v{L}\nv_cmp_eq_u32 vcc, 0, v{t0}\nv_mov_b32 v{vZ}, 0x7f000000\nv_cndmask_b32 v{vZ}, v{vZ}, 0, vcc")
        for j in range(9):
            pc += Is(f"v_add_u32 v{t0}, {64*j}, v{L}\nv_mul_u32_u24 v{t1}, 3641, v{t0}\nv_lshrrev_b32 v{t1}, 16, v{t1}\nv_mul_u32_u24 v{aWD[j]}, 18, v{t1}\nv_sub_u32 v{t0}, v{t0}, v{aWD[j]}\n"
                     f"v_add_u32 v{t0}, s{TK}, v{t0}\nv_subrev_u32 v{aWD[j]}, 18, v{t0}\nv_min_u32 v{t0}, v{t0}, v{aWD[j]}\n"
                     f"v_mul_u32_u24 v{t1}, 1152, v{t1}\nv_lshl_add_u32 v{t0}, v{t0}, 4, v{t1}\ns_sub_u32 s{U1}, s{U0}, {(j%4)*1024}\nv_add_u32 v{aWD[j]}, s{U1}, v{t0}")
        tl.at(B0 + 60, pc)
        C0 = tl.n()
        self.barrier(C0 - 16, lg=["B8_5"], vm=["hc0"])
        Qb, Kb, Vb, Cb, G8, U8 = accB
        accC = [[R[5], R[6], R[7], R[9]], [Kb, Vb, Cb, U8]]
        for hc in range(2):
            order = [(kp, g) for kp in range(9) for g in range(4)]
            if hc == 1: order = order[:24] + [(kp, g) for h in range(2) for kp in range(6, 9) for g in (2 * h, 2 * h + 1)]
            for oi, (kp, g) in enumerate(order):
                hs = 3 * hc + kp // 3
                if oi % 12 == 0: tl.at(tl.n() + 0.1, self.stamp(f"C{hs}"))
                buf = WF[G % 3]; tile, mat = g // 2, g % 2
                offs = [((kp % 3) * 2 + ks) * 4096 + mat * 2048 + i * 1024 for ks in range(2) for i in range(2)]
                b = self.group(accC[hc][g], buf, kp, kp == 0, False, self.trs(buf, aHCtr[tile], offs), f"C{hc}_{kp}_{g}")
                if kp % 3 == 2 and mat == 1 and hs < 5:
                    d = HCS[(hs + 1) % 3] - HCS[hs % 3]; a = aHCtr[tile]
                    tl.at(b - 15.9, I(f"v_add_u32 v{a}, {d}, v{a}" if d > 0 else f"v_subrev_u32 v{a}, {-d}, v{a}"))
                G += 1
        CB = lambda hs: C0 + 96 * hs - 16
        C1 = C0 + 288
        dr = self.p2s + (Is(f"s_add_u32 s{U1}, s{NT}, s{M2}") if opt.get("rotd", 1) else Is(f"s_mov_b32 s{U1}, 0"))
        for st in range(4):
            dr += Is(f"s_add_u32 s{U0}, s{U1}, {st}\ns_and_b32 s{U0}, s{U0}, 3\ns_lshl_b32 s{HO4[st]}, s{U0}, 12\ns_lshr_b32 s{WO4[st]}, s{U0}, 1\ns_mul_i32 s{WO4[st]}, s{WO4[st]}, {576*1152}\n"
                     f"s_and_b32 s{U0}, s{U0}, 1\ns_mul_i32 s{U0}, s{U0}, {256*1152}\ns_add_u32 s{WO4[st]}, s{WO4[st]}, s{U0}\ns_add_u32 s{WO4[st]}, s{WO4[st]}, s{RA}")
        for e in range(2):
            dr += Is(f"s_add_u32 s{U0}, s{U1}, {e}\ns_and_b32 s{U0}, s{U0}, 1\ns_lshl_b32 s{PH2[e]}, s{U0}, 12\ns_mul_i32 s{RO2[e]}, s{U0}, {4*18*1152}\ns_add_u32 s{RO2[e]}, s{RO2[e]}, s{RO}\n"
                     f"s_mul_i32 s{U0}, s{U0}, {576*1152}\ns_add_u32 s{RB2[e]}, s{U0}, s{RB}\ns_add_u32 s{RM2[e]}, s{U0}, s{RM}")
        tl.at(C0 - 100, dr + Is(f"s_mov_b32 s80, 0xffff\ns_mov_b32 s81, 0\ns_lshl_b32 s{U0}, s{W}, 12\ns_add_u32 s{U0}, s{U0}, {MISC}"))
        tmps = [aQKVd, aE]
        tl.at(C0 - 36, self.phi_block([Kb + r for r in range(16)], [aQKVd, aKV]))
        k1 = Is(f"v_lshl_add_u32 v{aMisc}, v{L}, 4, s{U0}\nv_and_b32 v{aL16}, 3, v{L}\nv_cmp_eq_u32 {MASK2}, 3, v{aL16}\nv_lshlrev_b32 v{aL16}, 4, v{L}\nv_mov_b32 v{aKV}, 0x3f803f80")
        k1 += [I(f"v_cvt_pk_bf16_f32 v{Kb+r}, v{Kb+2*r}, v{Kb+2*r+1}") for r in range(8)]
        k1 += [I(f"v_cvt_pk_bf16_f32 v{Vb+r}, v{Vb+2*r}, v{Vb+2*r+1}") for r in range(8)]
        for r in range(8):
            k1 += [I(f"v_cvt_pk_bf16_f32 v{Vb+8+r}, v{Cb+2*r}, v{Cb+2*r+1}"), I(f"v_cndmask_b32_e64 v{Vb+8+r}, v{Vb+8+r}, v{aKV}, {MASK2}")]
        k1 += self.phi_block([Cb + r for r in range(16)], tmps)
        k1 += [I(f"v_cvt_pk_bf16_f32 v{Cb+r}, v{Cb+2*r}, v{Cb+2*r+1}") for r in range(8)]
        tl.at(C0 - 15, k1)
        D = [Kb + 8, Kb + 12, Cb + 8, Cb + 12]
        km = []
        for j in range(2):
            for d, (a, b) in zip(D, ((Kb, Vb), (Kb, Vb + 8), (Cb, Vb), (Cb, Vb + 8))):
                km.append(I(f"{MF} {vr(d)}, {vr(a+4*j)}, {vr(b+4*j)}, {'0' if j == 0 else vr(d)}"))
        kvp = opt.get("kvp", 100)
        tl.at(C0 + kvp, km)
        tl.at(C0 + kvp + 10, [I(f"ds_write_b128 v{aMisc}, {vr(D[t])} offset:{1024*t}", tag="kw") for t in range(4)])
        tl.seq_at(CB(0), self.hc_batch(2))
        self.barrier(CB(1), lg=["C0_2_3"], vm=["hc1", "hs0"], post=self.flag_publish(1))
        tl.seq_at(CB(1), self.hc_batch(3) + self.wd_batch(0) + self.wd_batch(1))
        self.barrier(CB(2), lg=["C0_5_3"], vm=["hc2"])
        KB = C0 + kvp + 24
        self.xbar(KB, lg=["kw"])
        tl.at(KB - 12, Is(f"s_add_u32 s{U0}, s{MW1K}, {MISC}\nv_add_u32 v{vT}, s{U0}, v{aL16}\n"
                          f"s_lshl_b32 s{TK}, s{N}, 3\ns_add_u32 s{TK}, s{TK}, s{MT}\ns_lshl_b32 s{TK}, s{TK}, 12\ns_add_u32 s{TK}, s{TK}, s{MW1K}\ns_add_u32 s{TK}, s{TK}, {KV_OFF}"))
        tl.at(KB, [I(f"ds_read_b128 {vr(Kb+4*a)}, v{vT} offset:{4096*a}", tag="kr") for a in range(4)])
        red = [waitlgkm("kr")]
        for a in range(1, 4): red += [I(f"v_add_f32 v{Kb+r}, v{Kb+r}, v{Kb+4*a+r}") for r in range(4)]
        red += [costed(I(f"buffer_store_dwordx4 {vr(Kb)}, v{aL16}, {sWS}, s{TK} offen sc1", tag="kvs"), self.cST, True)]
        for x in red: x.dl = KB + 26
        tl.at(KB + 12, red)
        tl.seq_at(CB(2), self.hc_batch(4))
        F2 = KB + 26 + opt.get("f2lag", 85)
        self.xbar(F2, vm=["kvs"]); tl.at(F2, self.flag_publish(2))
        SEL = Vb
        tl.at(C0 + kvp + 9, self.sel_frags(SEL, aQKVd, aE, aKV))
        tq = [I(f"{MF} {vr(Cb+4*i)}, {vr(Vb+8+4*(i//2))}, {vr(SEL+4*(i%2))}, 0") for i in range(4)]
        tl.at(KB + 2, tq)
        q1 = [I(f"v_mul_f32 v{Cb+4*i+2}, 0xbfb8aa3b, v{Cb+4*i+2}") for i in range(4)] + [I(f"v_exp_f32 v{Cb+4*i+2}, v{Cb+4*i+2}") for i in range(4)]
        q1 += [I(f"v_add_f32 v{Cb+4*i+2}, 1.0, v{Cb+4*i+2}") for i in range(4)] + [I(f"v_rcp_f32 v{GATE+4*i+1}, v{Cb+4*i+2}") for i in range(4)]
        q1 += [I(f"v_sub_f32 v{GATE+4*i+2}, 1.0, v{GATE+4*i+1}") for i in range(4)]
        q1 += self.epi_pair(G8, U8, G8, 0, True) + self.phi_block([Cb + 4 * i + r for i in range(4) for r in range(2)], tmps) + self.phi_block([Qb + r for r in range(16)], tmps)
        for i in range(4):
            q1 += Is(f"v_cvt_pk_bf16_f32 v{Cb+4*i}, v{Cb+4*i}, v{Cb+4*i+1}\nv_cvt_pk_bf16_f32 v{Qb+4*i}, v{Qb+4*i}, v{Qb+4*i+1}\nv_cvt_pk_bf16_f32 v{Qb+4*i+1}, v{Qb+4*i+2}, v{Qb+4*i+3}\nv_mov_b32 v{Qb+4*i+3}, 0")
            x = I(f"v_permlane32_swap_b32 v{Cb+4*i}, v{Qb+4*i+2}"); x.reads |= x.writes; x.writes = set(x.reads); q1.append(x)
            q1.append(I(f"v_cndmask_b32_e64 v{Qb+4*i+2}, 0, v{Qb+4*i+2}, {MASKQ0}"))
        tl.at(KB + 10, q1)
        lb = self.lab("og")
        og = Is(f"s_mov_b64 exec, 0xffff") + [costed(I(f"buffer_store_dword v{GATE+4*i+2}, v{vT2}, {sWS}, 0 offen offset:{64*i} sc1", nocount=True), 0) for i in range(4)] + Is("s_mov_b64 exec, -1")
        for x in og: x.skip = True
        tl.at(KB + 11, Is(f"s_lshl_b32 s{U0}, s{Q}, 3\ns_add_u32 s{U0}, s{U0}, s{MT}\ns_lshl_b32 s{U0}, s{U0}, 2\ns_add_u32 s{U0}, s{U0}, s{W}\ns_lshl_b32 s{U0}, s{U0}, 8\ns_add_u32 s{U0}, s{U0}, {G_OFF}\nv_lshl_add_u32 v{vT2}, v{L}, 2, s{U0}"))
        og = Atom(Is(f"s_cmp_lg_u32 s{NL1K}, 0\ns_cbranch_scc1 {lb}") + og + [I(f"{lb}:")]); og[0].dl = C1 + 20
        tl.at(KB + 60, og)
        tl.at(CB(2) + 30, Is(f"s_lshr_b32 s{U0}, s{M2}, 1\ns_lshl_b32 s{U0}, s{U0}, 5\ns_lshl_b32 s{U1}, s{Q}, 3\ns_add_u32 s{U0}, s{U0}, s{U1}\ns_lshl_b32 s{U0}, s{U0}, 7\ns_add_u32 s{U0}, s{U0}, {FL_OFF}\n"
                             f"v_lshl_add_u32 v{vP}, v{L}, 7, s{U0}\nv_cmp_gt_u32 vcc, 8, v{L}\nv_or_b32 v{vF}, 0x7f000000, v{vZ}\nv_cndmask_b32 v{vP}, v{vF}, v{vP}, vcc\n"
                             f"s_lshl_b32 s{U0}, s{NQ}, 7\ns_add_u32 s{U0}, s{U0}, {FL_OFF}\nv_lshl_add_u32 v{vP2}, v{L}, 12, s{U0}\nv_cndmask_b32 v{vP2}, v{vF}, v{vP2}, vcc\n"
                             f"v_lshrrev_b32 v{vF}, 2, v{L}\nv_mul_u32_u24 v{vF}, 288, v{vF}\nv_and_b32 v{aP2tr}, 3, v{L}\nv_lshl_add_u32 v{aP2tr}, v{aP2tr}, 3, v{vF}"))
        self.poll(CB(3) - 50, CB(3) + 10, "p1", vF, vP, sWS, 1)
        self.barrier(CB(3), lg=["C0_8_3"], vm=["hc3"])
        tl.seq_at(CB(3), self.hc_batch(5))
        tl.at(C1 + 1, self.epi_pair(R[5], R[6], R[6], 0) + self.epi_pair(R[7], R[9], R[6], 1))
        tl.at(C1 + 0.5, Is(f"s_lshl_b32 s{U0}, s{Q}, 7\ns_lshl_b32 s{U1}, s{M2}, 3\ns_add_u32 s{U0}, s{U0}, s{U1}\ns_lshl_b32 s{U1}, s{W}, 1\ns_add_u32 s{U0}, s{U0}, s{U1}\n"
                           f"s_mul_i32 s{U0}, s{U0}, 40960\nv_add_u32 v{aP2H}, s{U0}, v{aL16}\ns_lshl_b32 s{TK}, s{NQ}, 15\ns_add_u32 s{TK}, s{TK}, s{MW1K}"))
        P2 = F2 + opt.get("p2lag", 50); K2 = P2 + opt.get("p2lead", 50)
        self.poll(P2, K2, "p2", vF2, vP2, sWS, 2)
        self.barrier(CB(4), lg=["C1_2_3"], vm=["hc4"])
        kvl = []
        for m in range(8):
            dst = (R[5] if m < 4 else R[7]) + 4 * (m % 4)
            d = costed(I(f"buffer_load_dwordx4 {vr(dst)}, v{aL16}, {sWS}, s{T3} offen sc1", tag="kvl"), opt.get("ckv", 6)); d.lat = 800
            d.prep = [I(f"s_add_u32 s{T3}, s{TK}, {KV_OFF + 4096*m}")]; kvl.append([d])
        tl.seq_at(K2 + 1, kvl)
        tl.seq_at(K2 + opt.get("hs1at", 50), self.hstore(R[6], 16, "hs1"))
        tl.seq_at(C1 + 33, self.h_batch(0)); tl.seq_at(C1 + 65, self.h_batch(1)); tl.seq_at(CB(4), self.wd_batch(2))
        tl.seq_at(C1 + 97, self.h_batch(2)); tl.seq_at(C1 + 129, self.h_batch(3))
        SB = K2 + opt.get("smlag", 100)
        sm = [waitvm("kvl")]
        for m in range(1, 8):
            src = (R[5] if m < 4 else R[7]) + 4 * (m % 4)
            sm += [I(f"v_add_f32 v{R[5]+r}, v{R[5]+r}, v{src+r}") for r in range(4)]
        sm += [I(f"ds_write_b128 v{vT}, {vr(R[5])} offset:{KVS-MISC}", tag="sw")]
        tl.at(SB, sm)
        self.barrier(CB(5), lg=["C1_5_3"], vm=["hc5"])
        NB = SB + 30
        assert K2 >= C1 + 2 and NB <= C0 + 576 - 75, (K2 - C1, NB - C0)
        self.xbar(NB, lg=["sw"])
        tl.at(NB - 8, I(f"v_add_u32 v{vT2}, {KVS}, v{aL16}"))
        tl.at(NB, [I(f"ds_read_b128 {vr(R[9]+4*t)}, v{vT2} offset:{1024*t}", tag="sr") for t in range(4)])
        nm = [waitlgkm("sr")]
        for a, (t0, t1) in enumerate(((0, 2), (1, 3))):
            for h, t in enumerate((t0, t1)):
                for z in range(2): nm.append(I(f"v_cvt_pk_bf16_f32 v{R[7]+4*a+2*h+z}, v{R[9]+4*t+2*z}, v{R[9]+4*t+2*z+1}"))
        tl.at(NB + 12, nm)
        nm = []
        for i in range(4):
            nm.append(I(f"{MF} {vr(R[9]+4*i)}, {vr(R[7]+4)}, {vr(Qb+4*i)}, 0"))
            nm.append(I(f"{MF} {vr(R[5]+4*i)}, {vr(R[7])}, {vr(Qb+4*i)}, 0"))
        tl.at(NB + 22, nm)
        fo = []
        for i in range(4): fo.append(I(f"v_add_f32 v{R[9]+4*i+3}, {EPS}, v{R[9]+4*i+3}"))
        for i in range(4): fo.append(I(f"v_rcp_f32 v{R[9]+4*i+3}, v{R[9]+4*i+3}"))
        for i in range(4): fo.append(I(f"v_mul_f32 v{R[9]+4*i+3}, v{R[9]+4*i+3}, v{GATE+4*i+1}"))
        for i in range(4):
            for r in range(4): fo.append(I(f"v_mul_f32 v{R[5]+4*i+r}, v{R[5]+4*i+r}, v{R[9]+4*i+3}"))
            for r in range(2): fo.append(I(f"v_mul_f32 v{R[9]+4*i+r}, v{R[9]+4*i+r}, v{R[9]+4*i+3}"))
            for h in range(2): fo.append(I(f"v_cvt_pk_bf16_f32 v{G8+4*i+2+h}, v{R[5]+4*i+2*h}, v{R[5]+4*i+2*h+1}"))
            fo.append(I(f"v_cvt_pk_bf16_f32 v{R[9]+4*i}, v{R[9]+4*i}, v{R[9]+4*i+1}"))
        tl.at(NB + 34, fo)
        tl.at(NB + 1, Is(f"s_lshl_b32 s{U0}, s{Q}, 7\ns_lshl_b32 s{U1}, s{MT}, 4\ns_add_u32 s{U0}, s{U0}, s{U1}\ns_lshl_b32 s{U1}, s{W}, 2\ns_add_u32 s{U0}, s{U0}, s{U1}\n"
                         f"s_lshl_b32 s{U0}, s{U0}, 9\ns_bfe_u32 s{U1}, s{NQ}, 0x20001\ns_lshl_b32 s{U1}, s{U1}, 7\ns_add_u32 s{U0}, s{U0}, s{U1}\n"
                         f"s_and_b32 s{U1}, s{NQ}, 1\ns_lshl_b32 s{U1}, s{U1}, 2\ns_add_u32 s{U0}, s{U0}, s{U1}\ns_add_u32 s{U0}, s{U0}, {E_OFF}\n"
                         f"v_and_b32 v{aE}, 15, v{L}\nv_lshl_add_u32 v{aE}, v{aE}, 3, s{U0}"))
        tl.seq_at(NB + 62, self.hstore(G8, 32, "hs2") + [Atom(Is("s_mov_b32 exec_lo, 0xffff0000\ns_mov_b32 exec_hi, 0") +
                  [costed(I(f"buffer_store_dword v{R[9]+4*i}, v{aE}, {sWS}, 0 offen offset:{512*i} sc1", tag="hs2"), 8) for i in range(4)] + [I("s_mov_b64 exec, -1")])])
        D0 = tl.n()
        WFD = [R[6], Qb, 24]
        accreg = [40, 44] + [R[7] + 4 * k for k in range(4)] + [R[5] + 4 * k for k in range(4)] + [R[9] + 4 * k for k in range(4)] + [G8 + 4 * k for k in range(4)]
        acc = lambda i, t: accreg[2 * t + i]
        GD = 0; DB = {}; gpos = {}
        ND = opt.get("nd", 4)
        seq = [(st, t) for st in range(10) for t in range(9) if not (st >= 10 - ND and t < 2)]
        late = [st for st in range(10 - ND, 10)]
        seq += [(st, t) for t in range(2) for st in late if st < 8] + [(st, t) for t in range(2) for st in late if st >= 8]
        slot_of = lambda st: P2S[st % 4]
        aOwn = aHCd2
        cur_st = 0; seen = set()
        for gi, (st, t) in enumerate(seq):
            base = tl.n(); deferred = (st, 2) in gpos and t < 2 and st >= 10 - ND
            if st not in seen:
                seen.add(st); DB[st] = base - 16
                tl.at(base + 0.1, self.stamp(f"D{st}"))
                tl.at(base - 1.1, waitvm(f"h{st}"))
            buf = WFD[GD % 3]; tag = f"D{st}_{t}"; gpos[st, t] = base
            if st != cur_st:
                d = slot_of(st) - slot_of(cur_st); cur_st = st
                tl.at(base - 16.05, I(f"v_add_u32 v{aP2tr}, {d}, v{aP2tr}" if d > 0 else f"v_subrev_u32 v{aP2tr}, {-d}, v{aP2tr}"))
            offs = [k * 9216 + i * 4608 + 32 * t for k in range(4) for i in range(2)]
            for rd in self.trs(buf, aP2tr, offs):
                rd.tag = tag; rd.dl = base - 6; tl.at(base - 16, rd)
            tl.at(base - 1, waitlgkm(tag))
            for i in range(2):
                for k in range(4):
                    d = vr(acc(i, t)); c = "0" if (st == 0 and k == 0) else d
                    tl.mfma(I(f"{MF} {d}, {vr(buf+4*k)}, {self.hreg(st,k,i)}, {c}"))
            GD += 1
        exl = Is(f"s_mul_i32 s{U0}, s{W}, 1152\ns_mov_b32 exec_hi, 15")
        for h in range(2): exl += self.flat([self.dma(aWD[0], sWO, f"s{T3}", U0, EXB + 576 * h, "ex", 6, pre=[I(f"s_add_u32 s{T3}, s{REX}, {(18*h+32)*1152}")])])
        exl = Atom(exl + [I("s_mov_b32 exec_hi, -1")])
        S0 = lambda st: DB[st] + 16
        EH = Kb; OM = [aHCd, aHCtr[0]]
        ewreg = lambda t: (Kb + 4 + 2 * t) if t < 6 else (Cb + 2 * (t - 6))
        ehl = [[costed(I(f"buffer_load_dwordx2 {vr(EH+2*i,2)}, v{aE}, {sWS}, s{TK} offen offset:{512*i} sc1", tag="eh"), 3)] for i in range(2)]
        oml = [[costed(I(f"buffer_load_dword v{OM[i]}, v{aHCtr[1]}, {sWS}, 0 offen offset:{64*i} sc1", tag="om"), 1)] for i in range(2)]
        self.barrier(DB[0], lg=["C1_8_3"], vm=["wd0"])
        tl.seq_at(DB[0], self.wd_batch(3))
        tl.at(D0 - 46, self.epi_pair(Kb, Vb, Vb, 0)); tl.at(D0 + 2, self.epi_pair(Cb, U8, Vb, 1))
        tl.seq_at(D0 + 10, self.hstore(Vb, 24, "hs3"))
        tl.at(D0 + 20, Is(f"s_lshl_b32 s{U0}, s{Q}, 4\ns_add_u32 s{U0}, s{U0}, s{M2}\ns_lshl_b32 s{U0}, s{U0}, 2\ns_add_u32 s{U0}, s{U0}, s{W}\ns_lshl_b32 s{U0}, s{U0}, 7\ns_add_u32 s{U0}, s{U0}, {G_OFF}\n"
                          f"v_and_b32 v{aHCtr[1]}, 15, v{L}\nv_lshl_add_u32 v{aHCtr[1]}, v{aHCtr[1]}, 2, s{U0}"))
        f3, f4 = opt.get("f3", 0), opt.get("f4", 2.5)
        for v, f, tags in ((3, f3, ["hs1"]), (4, f4, ["hs2", "hs3"])):
            pp = D0 + int(72 * f) + 8
            self.xbar(pp, vm=tags); tl.at(pp, self.flag_publish(v))
        pl = opt.get("plead", 50)
        c3 = D0 + int(72 * opt.get("c3", 2)); c4 = D0 + int(72 * opt.get("c4", 4.5))
        self.poll(c3 - pl, c3, "p3", vF, vP, sWS, 3); tl.seq_at(c3 + 1, self.h_batch(4) + self.h_batch(5) + oml)
        self.poll(c4 - pl, c4, "p4", vF, vP, sWS, 4); tl.seq_at(c4 + 1, self.h_batch(6) + self.h_batch(7) + self.h_batch(8) + self.h_batch(9) + ehl)
        for st in range(1, 10):
            self.barrier(DB[st], vm=[f"wd{st}"] + (["ex"] if st == 7 else []))
            if st <= 6:
                self.xbar(S0(st))
                tl.seq_at(S0(st), self.wd_batch(st + 3) + ([exl] if st == 2 else []))
        tl.at(c4 - 20, Is(f"s_lshl_b32 s{U0}, s{Q}, 7\ns_lshl_b32 s{U1}, s{M2}, 3\ns_add_u32 s{U0}, s{U0}, s{U1}\ns_lshl_b32 s{U1}, s{W}, 1\ns_add_u32 s{U0}, s{U0}, s{U1}\n"
                          f"s_lshl_b32 s{U0}, s{U0}, 9\ns_add_u32 s{TK}, s{U0}, {E_OFF}\nv_lshlrev_b32 v{aE}, 3, v{L}"))
        for t in sorted(range(9), key=lambda t: gpos[7, t]):
            tl.at(gpos[7, t] + 11, ([waitvm("om")] if gpos[7, t] == min(gpos[7, z] for z in range(9)) else []) + [I(f"v_mul_f32 v{acc(i,t)+r}, v{acc(i,t)+r}, v{OM[i]}") for i in range(2) for r in range(4)])
        SX = S0(8)
        tl.at(SX - 60, Is(f"v_lshrrev_b32 v{vT}, 2, v{L}\nv_mul_u32_u24 v{vT}, 288, v{vT}\nv_and_b32 v{vT2}, 3, v{L}\nv_lshl_add_u32 v{vT}, v{vT2}, 3, v{vT}\nv_add_u32 v{vT}, {EXB}, v{vT}"))
        for t in range(9):
            gp = gpos[8, t] + (20 if t < 2 and ND >= 2 else 12)
            if t == 1 and ND >= 2: gp = gpos[8, 0] + 12 if ND > 2 else gpos[8, 1] - 4
            tl.at(min(gp, SX + 8 * t + 12) - 16, I(f"ds_read_b64_tr_b16 {vr(ewreg(t),2)}, v{vT} offset:{32*t}", tag=f"ew{t}"))
            tl.at(gp, ([waitvm("eh")] if gpos[8, t] == SX else []) + [waitlgkm(f"ew{t}")] +
                  [I(f"v_mfma_f32_16x16x16_bf16 {vr(acc(i,t))}, {vr(ewreg(t),2)}, {vr(EH+2*i,2)}, {vr(acc(i,t))}") for i in range(2)])
        S9 = S0(9)
        XO = [86, 87, 3, 100, 101, 97, 88]; GRP, Z1, Z4, Z5 = 89, 65, 68, 69
        X = Cb + 5; gA, gA2, SEL = aKV, aMisc, Vb
        pre_ = []; F = lambda s: pre_.extend(Is(s))
        F(f"s_lshl_b32 s{GRP}, s{M2}, 2\ns_add_u32 s{GRP}, s{GRP}, s{NT}\ns_lshl_b32 s{GRP}, s{GRP}, 2")
        for t in range(2, 9):
            xo = XO[t - 2]
            pre_.append(Atom(Is(f"s_add_u32 s{U0}, s{OFF}, {t}\ns_cmp_ge_u32 s{U0}, 9\ns_cselect_b32 s{U1}, 9, 0\ns_sub_u32 s{U0}, s{U0}, s{U1}")))
            F(f"s_max_u32 s{U1}, s{U0}, 1\ns_sub_u32 s{U1}, s{U1}, 1\ns_lshr_b32 s{U1}, s{U1}, 1\ns_lshl_b32 s{Z4}, s{U1}, 1\ns_sub_u32 s{U0}, s{U0}, s{Z4}\ns_min_u32 s{Z4}, s{U1}, 1\ns_sub_u32 s{U0}, s{U0}, s{Z4}\n"
              f"s_add_u32 s{xo}, s{GRP}, s{U1}\ns_mul_i32 s{xo}, s{xo}, {4*12288}\ns_lshl_b32 s{U0}, s{U0}, 10\ns_add_u32 s{xo}, s{xo}, s{U0}")
            if t == 2: pre_.append(Atom(Is(f"s_cmp_eq_u32 s{U1}, s{Q}\ns_cselect_b32 s{xo}, 0x7f000000, s{xo}")))
        F(f"s_mul_i32 s{U0}, s{W}, 3072\ns_add_u32 s{U0}, s{U0}, {XB_OFF}\ns_mul_i32 s{U1}, s{Q}, 12288\ns_add_u32 s{U1}, s{U1}, s{U0}\nv_add_u32 v{aH}, s{U1}, v{aL16}")
        F(f"s_add_u32 s{U1}, s{GRP}, s{Q}\ns_mul_i32 s{U1}, s{U1}, {4*12288}\ns_add_u32 s{U1}, s{U1}, s{U0}\nv_add_u32 v{gA}, s{U1}, v{aL16}")
        pre_.append(Atom(Is(f"s_cmp_eq_u32 s{Q}, 0\ns_cselect_b32 s{Z5}, 0, 0x7f000000")))
        F(f"v_add_u32 v{gA2}, s{Z5}, v{gA}")
        for z in range(3): F(f"s_add_u32 s{Z1+z}, s{Q}, {z+1}\ns_and_b32 s{Z1+z}, s{Z1+z}, 3\ns_mul_i32 s{Z1+z}, s{Z1+z}, 12288")
        F(f"s_lshl_b32 s{U0}, s{MT}, 5\ns_and_b32 s{Z4}, s{N}, 7\ns_add_u32 s{U0}, s{U0}, s{Z4}\ns_lshl_b32 s{U0}, s{U0}, 7\ns_add_u32 s{U0}, s{U0}, {FL_OFF}\ns_lshl_b32 s{Z4}, s{W}, 2\ns_add_u32 s{U0}, s{U0}, s{Z4}\n"
          f"v_lshl_add_u32 v{vP2}, v{L}, 10, s{U0}\nv_cmp_gt_u32 vcc, 4, v{L}\nv_or_b32 v{X+1}, 0x7f000000, v{vZ}\nv_cndmask_b32 v{vP2}, v{X+1}, v{vP2}, vcc\ns_add_u32 s{FLAG}, s{FLAG}, s{Z4}")
        pre_ += self.sel_frags(SEL, X + 1, X + 2, X + 3)
        F(f"s_lshl_b32 s{U0}, s{W}, 12\ns_add_u32 s{U0}, s{U0}, {FIN}\nv_and_b32 v{X+1}, 15, v{L}\nv_mul_u32_u24 v{X+1}, 112, v{X+1}\nv_lshl_add_u32 v{X+1}, v{X+2}, 3, v{X+1}\nv_add_u32 v{X+1}, s{U0}, v{X+1}")
        F(f"s_lshl_b32 s{Z4}, s{M2}, 2\ns_add_u32 s{Z4}, s{Z4}, s{W}\ns_mul_i32 s{Z4}, s{Z4}, {32*1152}\ns_mul_i32 s{U1}, s{NT}, 288\ns_add_u32 s{Z4}, s{Z4}, s{U1}\ns_lshl_b32 s{U1}, s{OFF}, 5\ns_add_u32 s{Z4}, s{Z4}, s{U1}")
        for j in range(3):
            F(f"v_add_u32 v{X+8}, {64*j}, v{L}\nv_mul_u32_u24 v{X+9}, 10923, v{X+8}\nv_lshrrev_b32 v{X+9}, 16, v{X+9}\nv_mul_u32_u24 v{X+10}, 6, v{X+9}\nv_sub_u32 v{X+8}, v{X+8}, v{X+10}\nv_cmp_lt_u32 vcc, 3, v{X+8}\nv_lshlrev_b32 v{X+8}, 4, v{X+8}")
            F(f"v_mul_u32_u24 v{X+10}, 112, v{X+9}\nv_add3_u32 v{X+2+j}, v{X+10}, v{X+8}, s{U0}\nv_mul_u32_u24 v{X+10}, 1152, v{X+9}\nv_add3_u32 v{X+5+j}, v{X+10}, v{X+8}, s{Z4}\nv_add_u32 v{X+10}, s{Z5}, v{X+5+j}\nv_cndmask_b32 v{X+5+j}, v{X+5+j}, v{X+10}, vcc")
        for k, x in enumerate(pre_): tl.at(S0(5) + 20 + k * 0.001, x)
        PKR = lambda t: U8 + 4 * (t % 4)
        for t in range(2, 9):
            cv = [I(f"v_cvt_pk_bf16_f32 v{PKR(t)+2*i+h}, v{acc(i,t)+2*h}, v{acc(i,t)+2*h+1}") for i in range(2) for h in range(2)]
            d = costed(I(f"buffer_store_dwordx4 {vr(PKR(t))}, v{aH}, {sWS}, s{XO[t-2]} offen sc1", tag="xs"), 12, True); d.nopace = True
            tl.at(gpos[9, t] + 10, cv + [d])
        FP = min(gpos[9, 8] + 12 + opt.get("flag6", 50), tl.n() - 1)
        tl.at(FP - 8, Is(f"s_add_u32 s{U2}, s{NONCE}, 6\nv_mov_b32 v{vF2}, s{U2}\nv_cmp_eq_u32 vcc, 0, v{L}\nv_or_b32 v{vFV}, 0x7f000000, v{vZ}\nv_cndmask_b32 v{vFV}, v{vFV}, 0, vcc"))
        tl.at(FP, [fence(waitvm("xs")), costed(I(f"buffer_store_dword v{vF2}, v{vFV}, {sWS}, s{FLAG} offen sc1", tag="fl6"), 1, True)])
        END = tl.n() + 10
        fin = []
        F = lambda s: fin.extend(Is(s))
        fin += self.stamp("mainend")
        greg = lambda u, z: [224, 228, 232, 236, 240, 244, 248, 252, Kb][3 * u + z]
        fin += [I("s_barrier")] + self.stamp("drained")
        lp = self.lab("fp"); ok = self.lab("fo"); PV = [vF, vT, vT2]
        F(f"s_mov_b32 s{SPIN}, 0x20000")
        for k in range(3): F(f"buffer_load_dword v{PV[k]}, v{vP2}, {sWS}, 0 offen sc1" + ("\ns_sleep 2" if k < 2 else ""))
        F(f"{lp}:")
        for k in range(3):
            F(f"s_waitcnt vmcnt(2)\nv_subrev_u32 v{vP}, v{vF2}, v{PV[k]}\nv_cmp_gt_u32 vcc, 2, v{vP}\nbuffer_load_dword v{PV[k]}, v{vP2}, {sWS}, 0 offen sc1\ns_and_b32 s{U0}, vcc_lo, 15\ns_cmp_eq_u32 s{U0}, 15\ns_cbranch_scc1 {ok}")
        F(f"s_sub_u32 s{SPIN}, s{SPIN}, 1\ns_cmp_lg_u32 s{SPIN}, 0\ns_cbranch_scc1 {lp}\n{ok}:")
        for x in fin:
            if x.op == "buffer_load_dword": x.nocount = True
        fin += self.stamp("polled")
        for u in range(3):
            for z in range(3):
                fin.append(I(f"buffer_load_dwordx4 {vr(greg(u,z))}, v{gA2 if u == 2 else gA}, {sWS}, s{Z1+z} offen offset:{1024*u} sc1", tag=f"g{u}{z}"))
        for u in range(3):
            for z in range(3):
                fin.append(waitvm(f"g{u}{z}"))
                for h in range(2): fin.append(I(f"{MF} {vr(acc(h,u))}, {vr(SEL+4*h)}, {vr(greg(u,z))}, {vr(acc(h,u))}"))
        for u in range(3):
            for h in range(2):
                b = acc(h, u)
                F(f"v_cvt_pk_bf16_f32 v{b}, v{b}, v{b+1}\nv_cvt_pk_bf16_f32 v{b+1}, v{b+2}, v{b+3}")
                fin.append(I(f"ds_write_b64 v{X+1}, {vr(b,2)} offset:{32*u + 16*112*h}", tag="fw"))
        fin += self.stamp("summed")
        for j in range(3): fin.append(I(f"ds_read_b128 {vr(224+4*j)}, v{X+2+j}", tag=f"fr{j}"))
        for j in range(3):
            fin.append(waitlgkm(f"fr{j}"))
            fin.append(I(f"buffer_store_dwordx4 {vr(224+4*j)}, v{X+5+j}, {sOUT}, 0 offen{['', ' sc1', ' nt', ' sc0 sc1'][opt.get('osc', 0)]}", tag="o"))
        if opt.get("stamps"):
            F("s_waitcnt vmcnt(0)")
            fin += self.stamp("end"); F("s_waitcnt lgkmcnt(0)"); fin += self.stamp("x")
            F(f"v_mov_b32 v{vFV}, s98\ns_memrealtime s[98:99]\nbuffer_store_dword v{vFV}, off, {sWS}, s96 offset:1016\ns_waitcnt lgkmcnt(0)\nv_mov_b32 v{vF2}, s98\nbuffer_store_dword v{vF2}, off, {sWS}, s96 offset:1020")
            if opt.get("dbgxcc"):
                F(f"s_waitcnt vmcnt(0)\ns_cmp_ge_u32 s2, 16\ns_cbranch_scc1 L_end\ns_cmp_lg_u32 s{W}, 0\ns_cbranch_scc1 L_end")
                F(f"buffer_load_dword v64, off, {sWS}, s96 offset:1016 sc1\nbuffer_load_dword v65, off, {sWS}, s96 offset:1020 sc1\ns_getreg_b32 s{U0}, hwreg(HW_REG_XCC_ID)\ns_and_b32 s{U0}, s{U0}, 15\ns_waitcnt vmcnt(0)")
                F(f"v_sub_u32 v64, v65, v64\nv_mul_u32_u24 v64, 100, v64\nv_add_u32 v64, s{U0}, v64\ns_lshl_b32 s{U0}, s2, 2\nbuffer_store_dword v64, off, {sDBG}, s{U0} sc1")
            if "spina" in opt:
                a, b, m = opt["spina"], opt["spinb"], opt.get("spinm", 1)
                F(f"s_waitcnt vmcnt(0)\ns_or_b32 s{U0}, s2, s{W}\ns_cbranch_scc1 L_end")
                F(f"buffer_load_dword v64, off, {sWS}, s96 offset:{4*a} sc1\nbuffer_load_dword v65, off, {sWS}, s96 offset:{4*b} sc1\ns_waitcnt vmcnt(0)\nv_sub_u32 v64, v65, v64\nv_mul_u32_u24 v64, {m}, v64\ns_nop 1\nv_readfirstlane_b32 s{U0}, v64")
                F(f"s_memrealtime s[92:93]\ns_waitcnt lgkmcnt(0)\nL_spin:\ns_memrealtime s[94:95]\ns_waitcnt lgkmcnt(0)\ns_sub_u32 s{U1}, s94, s92\ns_cmp_lt_u32 s{U1}, s{U0}\ns_cbranch_scc1 L_spin")
            if opt.get("dbgout"):
                sel = [0, 1, 2, 3, 5, 12, 15, 18, 21, 26, 31, 32, 33, 35, 254, 255]
                F(f"s_waitcnt vmcnt(0)\ns_lshl_b32 s{U0}, s2, 2\ns_add_u32 s{U0}, s{U0}, s{W}\ns_cmp_lg_u32 s{U0}, {opt['dbgout']-1}\ns_cbranch_scc1 L_end")
                for i, x in enumerate(sel): F(f"buffer_load_dword v{64+i}, off, {sWS}, s96 offset:{4*x} sc1")
                F("s_waitcnt vmcnt(0)")
                for i, x in enumerate(sel): F(f"buffer_store_dword v{64+i}, off, {sDBG}, 0 offset:{4*i} sc1")
            sys.stderr.write("STAMPS " + ",".join(self.stamps[:-1]) + "\n")
        fin.append(I("s_endpgm"))
        tl.at(END, Atom(fin))
        rep = {}
        ins = self.pro + schedule(tl, rep, opt.get('stgap', 0), opt.get('bk', 150), 16.3, opt.get('pipe0', 0), opt.get('fill', 1))
        if opt.get("stamps") == 2:
            self.numbering = True; o2 = []
            for x in ins:
                if hasattr(x, "stampname"): o2 += self.stamp(*x.stampname)
                else: o2.append(x)
            ins = o2
            sys.stderr.write("STAMPS " + ",".join(self.stamps[:-1]) + "\n")
            open("stamps.txt", "w").write(",".join(self.stamps[:-1]))
        ins = resolve_waits(ins)
        hk = opt.get("hack", 0)
        if hk:
            o2 = []
            for x in ins:
                t = x.tag or ""
                if hk & 1 and x.kind == "vmem" and "store_dwordx4" in x.op: x.text = x.text.replace(" sc1", "")
                drop = (hk & 2 and t in ("hc3", "hc4", "hc5")) or (hk & 4 and t.startswith("qs") and "s[44:47]" in x.text) or \
                       (hk & 16 and t.startswith("wd") and (f"v{aWD[7]}," in x.text or f"v{aWD[8]}," in x.text)) or (hk & 32 and t.startswith("hs")) or (hk & 64 and t.startswith("h") and t[1:].isdigit() and "offset:3072" in x.text)
                if hk & 128 and x.kind == "vmem" and t and not x.nocount and (t[0] in "qhwk" or t[:2] in ("ex", "eh", "tc", "xs")) and not (t[0] == "w" and t[1:].isdigit()): continue
                if hk & 256 and x.kind == "ds" and "tr_b16" in x.op and (t[0] in "BCD" or (t[0] == "A" and int(t[1]) > 2)): continue
                if hk & 512 and x.kind == "valu" and x.op.startswith(("v_mul_f32", "v_cvt_pk", "v_exp", "v_max_f32", "v_add_f32")): continue
                if drop and x.kind == "vmem":
                    y = I("buffer_load_dword v60, off, s[36:39], 0 offset:128"); y.tag = x.tag; x = y
                if hk & 8 and x.kind == "mfma" and f"v[{GATE}" in x.text.split(",")[0] or (hk & 8 and x.kind == "mfma" and any(f"v[{GATE+4*i}:" in x.text.split(",")[0] for i in range(4))): continue
                o2.append(x)
            ins = o2
        ins = hoist_m0(ins)
        ins, added = fix_hazards(ins, verbose=opt.get("verbose"))
        errs = 0 if hk else check_waits(ins) + check_m0(ins)
        if opt.get("pgwarm", 0):
            step = opt.get("pgstep", 3584); out2 = []; nb = 0; nxt = step; stubs = []; started = False
            def isz(x):
                if x.kind in ("label", "other"): return 0
                if x.kind in ("mfma", "vmem", "ds"): return 8
                t = x.text
                import re as _re
                lit = any(not (-16 <= int(v, 0) <= 64) for v in _re.findall(r"(?<![\w\[:])(-?0x[0-9a-f]+|-?\d+)(?![\w\]:.])", t.split(None, 1)[1] if " " in t else "")) and not x.op.startswith(("s_waitcnt", "s_nop", "s_sleep", "s_cbranch", "s_branch"))
                vop3 = x.op.startswith(("v_cvt_pk", "v_lshl_add", "v_add3", "v_add_lshl", "v_bfe", "v_lshl_or", "v_readfirstlane")) and not x.op.startswith("v_readfirst") or "_e64" in x.op or (x.op.startswith("v_cmp") and "vcc" not in t.split(",")[0]) or (x.op.startswith("v_cndmask") and t.rstrip().endswith("0, vcc"))
                return 8 if (lit or vop3) else 4
            for k, x in enumerate(ins):
                out2.append(x); nb += isz(x)
                if not started and x.kind == "mfma": started = True
                if started and nb >= nxt and x.kind == "mfma" and k + 1 < len(ins) and ins[k + 1].kind in ("mfma", "ds", "valu") and not getattr(x, "skip", False):
                    stubs.append(len(out2)); out2.append(None); nxt = nb + step
            n = len(stubs)
            for k, pos in enumerate(stubs):
                out2[pos] = [I(f"L_pg{k}:"), I(f"s_cbranch_execz {'L_pg%d' % (k + 4) if k + 4 < n else 'L_pgback'}")]
            ins = []
            for x in out2:
                if isinstance(x, list): ins += x
                elif getattr(x, "pgentry", False):
                    ins += Is("s_mov_b64 exec, 0")
                    for w in range(4): ins += Is(f"s_cmp_eq_u32 s{W}, {w}\ns_cbranch_scc1 L_pg{w}")
                    ins += Is("L_pgback:\ns_mov_b64 exec, -1")
                else: ins.append(x)
            sys.stderr.write(f"page stubs {n}, est bytes {nb}\n")
        else: ins = [x for x in ins if not getattr(x, "pgentry", False)]
        slow, _ = fix_hazards(self.slow)
        sys.stderr.write(f"instrs={len(ins)} mfma={sum(x.kind=='mfma' for x in ins)} nop_states_added={added} errors={errs} overfull_gaps={rep['over']}\n")
        if opt.get("rep"):
            sys.stderr.write(f"A0={A0} B0={B0} C0={C0} D0={D0}\n")
            tl_ = rep["tline"]; sys.stderr.write(f"sim: A {tl_[B0]:.0f} B {tl_[C0]-tl_[B0]:.0f} C {tl_[D0]-tl_[C0]:.0f} D {tl_[-2]-tl_[D0]:.0f} stall {rep['simstall']:.0f} waits: " + " ".join(rep["stalls"]) + "\n")
            sys.stderr.write("shadow: " + " ".join(rep["shadow"]) + "\n")
            sys.stderr.write("slack(issue_last, wait, diff): " + " ".join(f"{t}:{v}" for t, v in rep["slack"].items()) + "\n")
            for k, v in sorted(rep["stat"].items()): sys.stderr.write(f"  gaps {72*k}..: {' '.join(v)}\n")
        import os
        ref = "gated_mix__linear_attn_block__glu_gated_bilinear__prompt.s.ref"
        head = open(ref).read().split("; Override")[0] if os.path.exists(ref) else ""
        self.errs = errs
        txt = head + "; @launch grid=(256,1,1) block=(256,1,1) lds=163840\n"
        txt += f'.amdgcn_target "amdgcn-amd-amdhsa--gfx950"\n.text\n.globl {NAME}\n.p2align 8\n.type {NAME},@function\n{NAME}:\n'
        txt += text_of(ins) + text_of(slow) + "L_end:\n  s_endpgm\n"
        txt += f'''.section .rodata,"a"
.p2align 6
.amdhsa_kernel {NAME}
  .amdhsa_next_free_vgpr 512
  .amdhsa_next_free_sgpr 102
  .amdhsa_accum_offset 256
  .amdhsa_float_denorm_mode_32 3
  .amdhsa_group_segment_fixed_size 0
  .amdhsa_kernarg_size 88
  .amdhsa_user_sgpr_count 2
  .amdhsa_user_sgpr_kernarg_segment_ptr 1
  .amdhsa_system_sgpr_workgroup_id_x 1
.end_amdhsa_kernel
'''
        return txt

if __name__ == "__main__":
    opt = {}
    out = sys.argv[1]
    for a in sys.argv[2:]:
        k, v = a.split("="); opt[k] = float(v) if "." in v else int(v)
    open(out, "w").write(Gen(opt).build())
    import subprocess
    r = subprocess.run(["clang", "-x", "assembler", "-target", "amdgcn-amd-amdhsa", "-mcpu=gfx950", "-c", out, "-o", "chk.o"], capture_output=True, text=True)
    if r.returncode: print("ASSEMBLY FAILED", r.stderr[:2000])
```
